```python
import torch

def _softmax(x, axis=-1):
    return torch.softmax(x, dim=axis)
def _gelu(x):
    return torch.nn.functional.gelu(x, approximate="tanh")
def _silu(x):
    return torch.nn.functional.silu(x)
def _sigmoid(x):
    return torch.sigmoid(x)
def _layernorm(x, axis=-1, eps=1e-5):
    m = x.mean(dim=axis, keepdim=True)
    v = x.var(dim=axis, keepdim=True, unbiased=False)
    return (x - m) / torch.sqrt(v + eps)
def _scatter_add(tgt, idx, src, axis=0):
    return tgt.clone().index_add_(axis, idx, src)
def _segment_sum(src, seg, n):
    out = torch.zeros((n,) + src.shape[1:], dtype=src.dtype)
    return out.index_add_(0, seg, src)
def _pad(x, pw):
    flat = tuple(v for pair in reversed(pw) for v in pair)
    return torch.nn.functional.pad(x, flat)

kernel_name = 'recurrent_scan__spectral_gfnet__geglu_ffn__prompt'

def setup_inputs():

    _w = (lambda a: (lambda t: t.to(torch.bfloat16) if t.is_floating_point() else t)(torch.as_tensor(a)))
    def _A_setup():
        B, S, D = 1, 2048, 1024
        Df = D // 2 + 1
        return {
            "x": _w((lambda *s: torch.randn(*s, dtype=torch.bfloat16) * 0.05)(B, S, D)),
            "w_r": _w((lambda *s: torch.randn(*s, dtype=torch.bfloat16) * 0.05)(S, Df) * 0.02),
            "w_i": _w((lambda *s: torch.randn(*s, dtype=torch.bfloat16) * 0.05)(S, Df) * 0.02),
        }
    _A_in = _A_setup()

    def _B_setup():
        B, S, D, F = 1, 2048, 1024, 3584
        return {
            "x": _w((lambda *s: torch.randn(*s, dtype=torch.bfloat16) * 0.05)(B, S, D)),
            "w_gate": _w((lambda *s: torch.randn(*s, dtype=torch.bfloat16) * 0.05)(D, F)),
            "w_up": _w((lambda *s: torch.randn(*s, dtype=torch.bfloat16) * 0.05)(D, F)),
            "w_down": _w((lambda *s: torch.randn(*s, dtype=torch.bfloat16) * 0.05)(F, D)),
        }
    _B_in = _B_setup()

    return {
        "A_x": _A_in["x"],
        "A_w_r": _A_in["w_r"],
        "A_w_i": _A_in["w_i"],
        "B_x": _B_in["x"],
        "B_w_gate": _B_in["w_gate"],
        "B_w_up": _B_in["w_up"],
        "B_w_down": _B_in["w_down"],
    }

def reference(A_x, A_w_r, A_w_i, B_x, B_w_gate, B_w_up, B_w_down):
    def _A_ref(x, w_r, w_i):
        B, S, D = x.shape
        X = (lambda x, axes=(-2,-1): torch.fft.rfft2(x.float(), dim=axes))(x, axes=(-2, -1))
        W = w_r + 1j * w_i
        X = X * W
        y = (lambda x, s, axes=(-2,-1): torch.fft.irfft2(x, s=s, dim=axes).to(torch.bfloat16))(X, (S, D), axes=(-2, -1))
        return y

    def _B_ref(x, w_gate, w_up, w_down):
        return (_gelu(x @ w_gate) * (x @ w_up)) @ w_down

    x = A_x
    xn = _layernorm(x, axis=-1)
    s = _A_ref(xn, A_w_r, A_w_i)
    g = _silu(_B_ref(xn, B_w_gate, B_w_up, B_w_down))
    return x + s * g
```

```python
class Asm:
    def __init__(self):
        self.lines = []
        self.nlab = 0
    def __call__(self, s):
        for l in s.split("\n"):
            l = l.strip()
            if l.endswith(":"):
                self.lines.append(l)
            elif l:
                self.lines.append("    " + l)
    def raw(self, s):
        self.lines.append(s)
    def label(self, name):
        self.lines.append(name + ":")
    def newlabel(self, base="L"):
        self.nlab += 1
        return "%s_%d" % (base, self.nlab)
    def comment(self, s):
        self.lines.append("    ; " + s)
    def text(self):
        return "\n".join(self.lines) + "\n"

def vr(b, n=1, p="v"):
    if n == 1:
        return "%s%d" % (p, b)
    return "%s[%d:%d]" % (p, b, b + n - 1)
def ar(b, n=1):
    return vr(b, n, "a")
def sr(b, n=1):
    return vr(b, n, "s")

def interleave(main, fill, positions=None):
    out = []
    out += fill.get(-1, [])
    for i, m in enumerate(main):
        out.append(m)
        out += fill.get(i, [])
    return out

def kernel_begin(a, name):
    a.raw(".globl %s" % name)
    a.raw(".p2align 8")
    a.raw(".type %s,@function" % name)
    a.label(name)

def kernel_desc(name, vgpr, sgpr, accum):
    return """.p2align 6
.amdhsa_kernel %s
  .amdhsa_next_free_vgpr %d
  .amdhsa_next_free_sgpr %d
  .amdhsa_accum_offset %d
  .amdhsa_group_segment_fixed_size 0
  .amdhsa_kernarg_size 80
  .amdhsa_user_sgpr_count 2
  .amdhsa_user_sgpr_kernarg_segment_ptr 1
  .amdhsa_system_sgpr_workgroup_id_x 1
.end_amdhsa_kernel
""" % (name, vgpr, sgpr, accum)

def srd(a, d, lo, hi, nbytes, add=0):
    if add == 0:
        a("s_mov_b32 s%d, s%d" % (d, lo))
        a("s_mov_b32 s%d, s%d" % (d + 1, hi))
    elif add > 0:
        a("s_add_u32 s%d, s%d, 0x%x" % (d, lo, add))
        a("s_addc_u32 s%d, s%d, 0" % (d + 1, hi))
    else:
        a("s_sub_u32 s%d, s%d, 0x%x" % (d, lo, -add))
        a("s_subb_u32 s%d, s%d, 0" % (d + 1, hi))
    a("s_mov_b32 s%d, 0x%x" % (d + 2, nbytes))
    a("s_mov_b32 s%d, 0x20000" % (d + 3))
```

```python
from asmlib import *
WS_XN = 0
WS_H  = 4 << 20
WS_X1 = 20 << 20
WS_V  = 24 << 20
WS_S  = 28 << 20
WS_DBG = 32 << 20
F = 3584

def stamp(a, cfg, idx, sbase=56):
    if cfg.get("stamps"):
        a("s_memtime s[%d:%d]" % (sbase + 4 * idx, sbase + 4 * idx + 1))
        a("s_memrealtime s[%d:%d]" % (sbase + 4 * idx + 2, sbase + 4 * idx + 3))

def stamps_out(a, cfg, n, s_ws_lo, s_wg, vtmp, region, sbase=56):
    if not cfg.get("stamps"):
        return
    a("s_waitcnt lgkmcnt(0) vmcnt(0)")
    stamp(a, cfg, n)
    a("s_waitcnt lgkmcnt(0)")
    n += 1
    assert n <= 7
    srd(a, 84, s_ws_lo, s_ws_lo + 1, 1 << 20, WS_DBG + region)
    a("v_lshrrev_b32 v%d, 6, v0" % vtmp)
    a("v_lshlrev_b32 v%d, 6, v%d" % (vtmp, vtmp))
    a("s_lshl_b32 s88, s%d, 9" % s_wg)
    a("v_add_u32 v%d, s88, v%d" % (vtmp, vtmp))
    for i in range(n):
        a("v_mov_b32 v%d, s%d" % (vtmp + 1, sbase + 4 * i))
        a("buffer_store_dword v%d, v%d, s[84:87], 0 offen offset:%d" % (vtmp + 1, vtmp, 4 * i))
        a("v_mov_b32 v%d, s%d" % (vtmp + 1, sbase + 4 * i + 2))
        a("buffer_store_dword v%d, v%d, s[84:87], 0 offen offset:%d" % (vtmp + 1, vtmp, 32 + 4 * i))
    a("s_waitcnt vmcnt(0)")

def gen_gemm1(a, cfg):
    NW = cfg.get("nw", 4)
    R = cfg.get("ring", 4)
    WN = NW // 2
    FT = 8 // WN
    XT = 8
    NCH = 8 // NW
    ND = 4 * NCH
    NS = 32
    sXN, sWG, sWU, sH = 8, 12, 16, 20
    s_mb, s_ft, s_w = 24, 25, 26
    s_sx, s_sw, s_m0, s_cnt = 27, 28, 29, 30
    a("s_load_dwordx4 s[32:35], s[0:1], 32")
    a("s_load_dwordx2 s[36:37], s[0:1], 72   ; ws")
    stamp(a, cfg, 0)
    a("s_and_b32 s5, s3, 1")
    a("s_lshl_b32 s5, s5, 2")
    a("s_and_b32 s6, s4, 3")
    a("s_add_u32 s%d, s5, s6" % s_mb)
    a("s_lshr_b32 s5, s3, 1")
    a("s_mul_i32 s5, s5, 7")
    a("s_lshr_b32 s6, s4, 2")
    a("s_add_u32 s%d, s5, s6" % s_ft)
    vL, vT0, vT1, vT2 = 1, 2, 3, 4
    vDX = 5
    vDW = 7
    NSET = (R + 1) // 2
    vRX = 9
    vRW = 12
    vG = 24; vR = 25
    fragbase = 32
    fX = lambda st, xi: fragbase + st * (4 * XT + 8 * FT) + 4 * xi
    fW = lambda st, u, fi: fragbase + st * (4 * XT + 8 * FT) + 4 * XT + 4 * (u * FT + fi)
    nfrag = 2 * (4 * XT + 8 * FT)
    acc = lambda u, fi, xi: 4 * ((u * FT + fi) * XT + xi)
    nacc = 2 * FT * XT * 4
    a("v_lshrrev_b32 v%d, 6, v0" % vT0)
    a("v_and_b32 v%d, 63, v0" % vL)
    a("v_readfirstlane_b32 s%d, v%d" % (s_w, vT0))
    a("v_lshrrev_b32 v%d, 4, v%d" % (vG, vL))
    a("v_and_b32 v%d, 15, v%d" % (vT0, vL))
    a("v_lshlrev_b32 v%d, 6, v%d" % (vT1, vT0))
    a("v_lshl_add_u32 v%d, v%d, 4, v%d" % (vT1, vG, vT1))
    a("s_mul_i32 s5, s%d, %d" % (s_w, NCH * 2048))
    a("v_add_u32 v%d, s5, v%d" % (vDX, vT1))
    if NCH == 2:
        a("v_add_u32 v%d, 2048, v%d" % (vDX + 1, vDX))
    a("s_mul_i32 s5, s%d, %d" % (s_w, NCH))
    a("s_lshr_b32 s6, s5, 1")
    a("s_and_b32 s6, s6, 1")
    a("s_lshl_b32 s6, s6, 2")
    a("v_or_b32 v%d, s6, v%d" % (vT1, vG))
    a("v_lshlrev_b32 v%d, 1, v%d" % (vT1, vT1))
    a("v_xor_b32 v%d, v%d, v%d" % (vT1, vT1, vT0))
    a("v_lshlrev_b32 v%d, 4, v%d" % (vT1, vT1))
    a("s_lshl_b32 s6, s5, 2")
    a("v_add_u32 v%d, s6, v%d" % (vT2, vG))
    a("v_mul_u32_u24 v%d, %d, v%d" % (vT2, 2 * F, vT2))
    a("s_lshl_b32 s6, s%d, 8" % s_ft)
    a("v_add3_u32 v%d, v%d, v%d, s6" % (vDW, vT1, vT2))
    if NCH == 2:
        a("v_add_u32 v%d, %d, v%d" % (vDW + 1, 4 * 2 * F, vDW))
    a("s_lshl_b32 s%d, s5, 12" % s_m0)
    a("s_lshl_b32 s%d, s%d, 19" % (s_sx, s_mb))
    a("s_mov_b32 s%d, 0" % s_sw)
    a("s_waitcnt lgkmcnt(0)")
    srd(a, sXN, 36, 37, 4 << 20, WS_XN)
    srd(a, sWG, 32, 33, 1024 * F * 2 + 2048, -2048)
    srd(a, sWU, 34, 35, 1024 * F * 2 + 3072, -3072)

    def dma(slot):
        gs = []
        for c in range(NCH):
            m0 = ["s_add_u32 m0, s%d, %d" % (s_m0, slot * 32768 + c * 4096)]
            gs.append(m0 + ["s_nop 0", "buffer_load_dwordx4 v%d, s[%d:%d], s%d offen offset:2048 lds" % (vDW + c, sWG, sWG + 3, s_sw)])
            gs.append(["buffer_load_dwordx4 v%d, s[%d:%d], s%d offen offset:3072 lds" % (vDW + c, sWU, sWU + 3, s_sw)])
            gs.append(["buffer_load_dwordx4 v%d, s[%d:%d], s%d offen lds" % (vDX + c, sXN, sXN + 3, s_sx)])
            gs.append(["buffer_load_dwordx4 v%d, s[%d:%d], s%d offen offset:1024 lds" % (vDX + c, sXN, sXN + 3, s_sx)])
        gs[-1] = gs[-1] + ["s_add_u32 s%d, s%d, 16384" % (s_sx, s_sx), "s_add_u32 s%d, s%d, %d" % (s_sw, s_sw, 32 * 2 * F)]
        return gs
    for s in range(R):
        for g in dma(s):
            for i in g:
                a(i)
    srd(a, sH, 36, 37, 2048 * F * 2, WS_H)
    a("s_lshr_b32 s5, s%d, %d" % (s_w, 1 if WN == 2 else 2))
    a("s_and_b32 s6, s%d, %d" % (s_w, WN - 1))
    a("s_lshl_b32 s7, s5, 14")
    a("v_lshl_add_u32 v%d, v%d, 4, s7" % (vRX, vL))
    for k in range(1, NSET):
        a("v_add_u32 v%d, 0x%x, v%d" % (vRX + k, 65536 * k, vRX))
    a("v_bfe_u32 v%d, v%d, 2, 2" % (vR, vL))
    a("v_and_b32 v%d, 1, v%d" % (vT0, vG))
    a("v_lshl_or_b32 v%d, v%d, 2, v%d" % (vT0, vT0, vR))
    a("v_lshlrev_b32 v%d, 13, v%d" % (vT1, vG))
    a("v_lshl_add_u32 v%d, v%d, 8, v%d" % (vT1, vR, vT1))
    a("v_and_b32 v%d, 3, v%d" % (vT2, vL))
    a("v_lshl_add_u32 v%d, v%d, 3, v%d" % (vT1, vT2, vT1))
    a("s_mul_i32 s7, s6, %d" % FT)
    for fi in range(FT):
        a("s_add_u32 s31, s7, %d" % fi)
        a("v_xor_b32 v%d, s31, v%d" % (vT2, vT0))
        a("v_lshl_add_u32 v%d, v%d, 5, v%d" % (vRW + fi, vT2, vT1))
        for k in range(1, NSET):
            a("v_add_u32 v%d, 0x%x, v%d" % (vRW + k * FT + fi, 65536 * k, vRW + fi))
    for i in range(nacc):
        a("v_accvgpr_write_b32 a%d, 0" % i)

    def reads(slot, st):
        k, off = slot // 2, (slot % 2) * 32768
        rx = ["ds_read_b128 %s, v%d offset:%d" % (vr(fX(st, xi), 4), vRX + k, off + (xi >> 1) * 4096 + (xi & 1) * 1024) for xi in range(XT)]
        rw = []
        for fi in range(FT):
            for u in range(2):
                for jj in range(2):
                    rw.append("ds_read_b64_tr_b16 %s, v%d offset:%d" % (vr(fW(st, u, fi) + 2 * jj, 2), vRW + k * FT + fi, off + jj * 4096 + 2048 + u * 1024))
        return rw[:2] + rx + rw[2:]
    def mfmas(st):
        l = []
        order = cfg.get("order", "wx")
        if order == "xw":
            for xi in range(XT):
                for fi in range(FT):
                    for u in range(2):
                        c = ar(acc(u, fi, xi), 4)
                        l.append("v_mfma_f32_16x16x32_bf16 %s, %s, %s, %s" % (c, vr(fW(st, u, fi), 4), vr(fX(st, xi), 4), c))
            return l
        if order == "diag":
            nw_ = 2 * FT
            for d in range(XT):
                for w_ in range(nw_):
                    xi = (w_ + d) % XT
                    fi, u = w_ // 2, w_ % 2
                    c = ar(acc(u, fi, xi), 4)
                    l.append("v_mfma_f32_16x16x32_bf16 %s, %s, %s, %s" % (c, vr(fW(st, u, fi), 4), vr(fX(st, xi), 4), c))
            return l
        for fi in range(FT):
            for u in range(2):
                xs = list(range(XT))
                if order == "snake" and u == 1: xs = xs[::-1]
                for xi in xs:
                    c = ar(acc(u, fi, xi), 4)
                    l.append("v_mfma_f32_16x16x32_bf16 %s, %s, %s, %s" % (c, vr(fW(st, u, fi), 4), vr(fX(st, xi), 4), c))
        return l
    a("s_waitcnt vmcnt(%d)" % ((R - 1) * ND))
    a("s_barrier")
    for i in reads(0, 0):
        a(i)
    if cfg.get("noread"):
        a("s_waitcnt vmcnt(0)")
        a("s_barrier")
        for i in reads(1, 1):
            a(i)
    stamp(a, cfg, 1)
    NM = 2 * FT * XT
    def interval(s, do_dma, do_read, vm):
        a("s_waitcnt lgkmcnt(0) vmcnt(%d)" % vm if vm is not None else "s_waitcnt lgkmcnt(0)")
        if do_read:
            a("s_barrier")
        fill = {}
        if cfg.get("noread"): do_read = False
        if cfg.get("nodma"): do_dma = False
        if do_read:
            rd = reads((s + 1) % R, (s + 1) % 2)
            r0 = cfg.get("rd_start", 0); rstep = cfg.get("rd_step", 2 if NW == 4 else 1)
            for i, x in enumerate(rd):
                fill.setdefault(min(NM - 1, r0 + i * rstep), []).append(x)
        if do_dma:
            d0 = cfg.get("dma_start", 1); dstep = cfg.get("dma_step", 8)
            for i, g in enumerate(dma(s % R)):
                fill.setdefault(min(NM - 1, d0 + i * dstep), []).extend(g)
        for i in interleave(mfmas(s % 2), fill):
            a(i)
    U = R if R % 2 == 0 else 2 * R
    nloop = (NS - R) // U
    a("s_mov_b32 s%d, %d" % (s_cnt, nloop))
    lab = a.newlabel("L_g1loop")
    a.raw(".p2align 6")
    a.label(lab)
    for s in range(U):
        interval(s, True, True, (R - 2) * ND)
    if cfg.get("iterstamps"):
        a("s_memtime s[46:47]")
        a("s_memrealtime s[48:49]")
        a("s_waitcnt lgkmcnt(0)")
        a("s_mov_b32 m0, s%d" % s_cnt)
        a("v_writelane_b32 v30, s46, m0")
        a("v_writelane_b32 v31, s48, m0")
    a("s_sub_u32 s%d, s%d, 1" % (s_cnt, s_cnt))
    a("s_cmp_lg_u32 s%d, 0" % s_cnt)
    a("s_cbranch_scc1 %s" % lab)
    for s in range(nloop * U, NS):
        dd = s + R < NS
        last_issued = min(s + R - 1, NS - 1)
        interval(s, dd, s + 1 < NS, max(0, last_issued - (s + 1)) * ND if s + 1 < NS else None)
    stamp(a, cfg, 2)
    a("s_lshl_b32 s7, s%d, 1" % s_mb)
    a("s_add_u32 s7, s7, s5")
    a("s_mul_i32 s7, s7, 112")
    a("s_lshl_b32 s31, s%d, 2" % s_ft)
    a("s_add_u32 s7, s7, s31")
    a("s_mul_i32 s31, s6, %d" % (FT // 2))
    a("s_add_u32 s7, s7, s31")
    a("s_lshl_b32 s7, s7, 13")
    a("v_lshl_add_u32 v%d, v%d, 4, s7" % (vT0, vL))
    a("v_add_u32 v%d, 4096, v%d" % (vT1, vT0))
    import math
    c1 = -2.0 * math.sqrt(2.0 / math.pi) * math.log2(math.e)
    c2 = c1 * 0.044715
    import struct
    f2u = lambda x: struct.unpack("<I", struct.pack("<f", x))[0]
    a("s_mov_b32 s40, 0x%x" % f2u(c1)); a("s_mov_b32 s41, s40")
    a("s_mov_b32 s42, 0x%x" % f2u(c2)); a("s_mov_b32 s43, s42")
    a("s_mov_b32 s44, 1.0"); a("s_mov_b32 s45, 1.0")
    a("v_mov_b32 v26, s40"); a("v_mov_b32 v27, s40")
    a("s_nop 7")
    tb = fragbase
    n = 0
    for fp in range(FT // 2):
        for xi in range(XT):
            b = tb + (n % (4 if NW == 4 else 3)) * 32
            n += 1
            G, Uu, T, O = b, b + 8, b + 16, b + 24
            for h in range(2):
                for j in range(4):
                    a("v_accvgpr_read_b32 v%d, a%d" % (G + 4 * h + j, acc(0, 2 * fp + h, xi) + j))
            for h in range(2):
                for j in range(4):
                    a("v_accvgpr_read_b32 v%d, a%d" % (Uu + 4 * h + j, acc(1, 2 * fp + h, xi) + j))
            for p in range(4):
                a("v_pk_mul_f32 %s, %s, %s" % (vr(T + 2 * p, 2), vr(G + 2 * p, 2), vr(G + 2 * p, 2)))
            for p in range(4):
                a("v_pk_fma_f32 %s, %s, s[42:43], v[26:27]" % (vr(T + 2 * p, 2), vr(T + 2 * p, 2)))
            for p in range(4):
                a("v_pk_mul_f32 %s, %s, %s" % (vr(T + 2 * p, 2), vr(T + 2 * p, 2), vr(G + 2 * p, 2)))
            for p in range(8):
                a("v_exp_f32 v%d, v%d" % (T + p, T + p))
            for p in range(4):
                a("v_pk_mul_f32 %s, %s, %s" % (vr(G + 2 * p, 2), vr(G + 2 * p, 2), vr(Uu + 2 * p, 2)))
            for p in range(4):
                a("v_pk_add_f32 %s, %s, s[44:45]" % (vr(T + 2 * p, 2), vr(T + 2 * p, 2)))
            for p in range(8):
                a("v_rcp_f32 v%d, v%d" % (T + p, T + p))
            a("s_nop 0")
            for p in range(4):
                a("v_pk_mul_f32 %s, %s, %s" % (vr(G + 2 * p, 2), vr(G + 2 * p, 2), vr(T + 2 * p, 2)))
            for p in range(4):
                a("v_cvt_pk_bf16_f32 v%d, v%d, v%d" % (O + p, G + 2 * p, G + 2 * p + 1))
            off = xi * 1024
            vo = vT0 if off < 4096 else vT1
            a("s_mov_b32 s31, %d" % (fp * 8192))
            a("buffer_store_dwordx4 %s, v%d, s[%d:%d], s31 offen offset:%d %s" % (vr(O, 4), vo, sH, sH + 3, off % 4096, cfg.get("hstore", "")))
    stamp(a, cfg, 3)
    stamps_out(a, cfg, 4, 36, 2, vT0, 0)
    if cfg.get("iterstamps"):
        srd(a, 84, 36, 37, 4 << 20, WS_DBG + (1 << 20))
        a("s_lshl_b32 s88, s2, 12")
        a("v_lshl_add_u32 v%d, v0, 3, s88" % vT0)
        a("buffer_store_dwordx2 v[30:31], v%d, s[84:87], 0 offen" % vT0)
        a("s_waitcnt vmcnt(0)")
    a("s_endpgm")
    accum = 256 if NW == 4 else 128
    assert fragbase + max(nfrag, 128 if NW == 4 else 96) <= accum
    return accum + nacc, accum
```

```python
from asmlib import *
from g1 import WS_XN, WS_H, WS_X1, WS_V, WS_S, WS_DBG, F, stamp, stamps_out
import math, struct
f2u = lambda x: struct.unpack("<I", struct.pack("<f", x))[0]

def gen_gemm2(a, cfg):
    sH, sWD, sX, sS, sO = 8, 12, 16, 20, 24
    s_mb, s_nb, s_w, s_sh, s_sw, s_m0, s_cnt = 28, 29, 30, 31, 38, 39, 40
    a("s_cmp_ge_u32 s2, 256")
    a("s_cbranch_scc1 L_kc_exit")
    a("s_load_dwordx2 s[32:33], s[0:1], 0     ; x")
    a("s_load_dwordx4 s[44:47], s[0:1], 48")
    a("s_load_dwordx2 s[36:37], s[0:1], 72    ; ws")
    stamp(a, cfg, 0)
    a("s_and_b32 s3, s2, 7")
    a("s_lshr_b32 s4, s2, 3")
    a("s_lshr_b32 s5, s3, 1")
    a("s_lshl_b32 s5, s5, 2")
    a("s_and_b32 s6, s4, 3")
    a("s_add_u32 s%d, s5, s6" % s_mb)
    a("s_and_b32 s5, s3, 1")
    a("s_lshl_b32 s5, s5, 3")
    a("s_lshr_b32 s6, s4, 2")
    a("s_add_u32 s%d, s5, s6" % s_nb)
    vL, vT0, vT1, vT2, vG, vR = 1, 2, 3, 4, 5, 6
    vH = 8
    vD = 10
    vRW = 14
    vE = 18
    vXS = 32
    fWb = 64
    fHb = 96
    fW = lambda st, dt: fWb + st * 16 + 4 * dt
    fH = lambda p, xi: fHb + p * 32 + 4 * xi
    acc = lambda dt, xi: 4 * (xi * 4 + dt)
    a("v_lshrrev_b32 v%d, 6, v0" % vT0)
    a("v_and_b32 v%d, 63, v0" % vL)
    a("v_readfirstlane_b32 s%d, v%d" % (s_w, vT0))
    a("v_lshlrev_b32 v%d, 4, v%d" % (vH, vL))
    a("v_add_u32 v%d, 4096, v%d" % (vH + 1, vH))
    a("v_lshrrev_b32 v%d, 4, v%d" % (vG, vL))
    a("v_lshlrev_b32 v%d, 1, v%d" % (vT0, vG))
    a("v_and_b32 v%d, 7, v%d" % (vT1, vL))
    a("v_xor_b32 v%d, v%d, v%d" % (vT0, vT0, vT1))
    a("v_lshrrev_b32 v%d, 3, v%d" % (vT2, vL))
    a("v_lshlrev_b32 v%d, 11, v%d" % (vT2, vT2))
    a("v_lshl_add_u32 v%d, v%d, 4, v%d" % (vT0, vT0, vT2))
    a("s_lshl_b32 s5, s%d, 7" % s_nb)
    a("v_add_u32 v%d, s5, v%d" % (vD, vT0))
    for i in range(1, 4):
        a("v_add_u32 v%d, %d, v%d" % (vD + i, i * (16384 - 1024), vD))
    a("v_lshl_add_u32 v%d, v%d, 4, v%d" % (vE, vT1, vT2))
    a("s_lshl_b32 s6, s%d, 18" % s_mb)
    a("s_add_u32 s5, s5, s6")
    a("s_lshl_b32 s6, s%d, 16" % s_w)
    a("s_add_u32 s5, s5, s6")
    a("v_add_u32 v%d, s5, v%d" % (vE, vE))
    a("s_mul_i32 s%d, s%d, 112" % (s_sh, s_mb))
    a("s_add_u32 s%d, s%d, s%d" % (s_sh, s_sh, s_w))
    a("s_lshl_b32 s%d, s%d, 13" % (s_sh, s_sh))
    a("s_lshl_b32 s%d, s%d, 16" % (s_sw, s_w))
    a("s_lshl_b32 s%d, s%d, 14" % (s_m0, s_w))
    a("s_waitcnt lgkmcnt(0)")
    srd(a, sWD, 44, 45, F * 1024 * 2)
    srd(a, sH, 36, 37, 2048 * F * 2, WS_H)
    def ldW(slot):
        l = ["s_add_u32 m0, s%d, %d" % (s_m0, slot * 4096), "s_nop 0"]
        g = [l + ["buffer_load_dwordx4 v%d, s[%d:%d], s%d offen lds" % (vD, sWD, sWD + 3, s_sw)]]
        for i in range(1, 4):
            g.append(["buffer_load_dwordx4 v%d, s[%d:%d], s%d offen offset:%d lds" % (vD + i, sWD, sWD + 3, s_sw, i * 1024)])
        g[-1].append("s_add_u32 s%d, s%d, %d" % (s_sw, s_sw, 4 * 65536))
        return g
    def ldH(p):
        g = [["buffer_load_dwordx4 %s, v%d, s[%d:%d], s%d offen offset:%d %s" % (vr(fH(p, xi), 4), vH + (xi >> 2), sH, sH + 3, s_sh, (xi & 3) * 1024, cfg.get("hld", ""))] for xi in range(8)]
        g[-1].append("s_add_u32 s%d, s%d, %d" % (s_sh, s_sh, 4 * 8192))
        return g
    for p in range(4):
        for g in ldW(p) + ldH(p):
            for i in g:
                a(i)
    srd(a, sX, 32, 33, 4 << 20)
    srd(a, sS, 36, 37, 4 << 20, WS_S)
    srd(a, sO, 46, 47, 4 << 20)
    a("v_bfe_u32 v%d, v%d, 2, 2" % (vR, vL))
    a("v_lshl_add_u32 v%d, v%d, 2, v%d" % (vT0, vG, vR))
    a("v_bfe_u32 v%d, v%d, 1, 2" % (vT1, vT0))
    a("v_lshlrev_b32 v%d, 7, v%d" % (vT0, vT0))
    a("v_and_b32 v%d, 3, v%d" % (vT2, vL))
    a("v_lshl_add_u32 v%d, v%d, 3, v%d" % (vT0, vT2, vT0))
    a("v_add_u32 v%d, s%d, v%d" % (vT0, s_m0, vT0))
    for dt in range(4):
        a("v_xor_b32 v%d, %d, v%d" % (vT2, dt, vT1))
        a("v_lshl_add_u32 v%d, v%d, 5, v%d" % (vRW + dt, vT2, vT0))
    for i in range(128):
        a("v_accvgpr_write_b32 a%d, 0" % i)
    def rdW(slot, st):
        return ["ds_read_b64_tr_b16 %s, v%d offset:%d" % (vr(fW(st, dt) + 2 * jj, 2), vRW + dt, slot * 4096 + jj * 2048) for dt in range(4) for jj in range(2)]
    a("s_waitcnt vmcnt(44)")
    for i in rdW(0, 0):
        a(i)
    stamp(a, cfg, 1)
    NI = 28
    def it(i, ld, rd, vm):
        a("s_waitcnt lgkmcnt(0) vmcnt(%d)" % vm)
        mf = []
        for xi in range(8):
            for dt in range(4):
                c = ar(acc(dt, xi), 4)
                mf.append("v_mfma_f32_16x16x32_bf16 %s, %s, %s, %s" % (c, vr(fW(i % 2, dt), 4), vr(fH(i % 4, xi), 4), c))
        fill = {}
        if rd:
            for k, x in enumerate(rdW((i + 1) % 4, (i + 1) % 2)):
                fill.setdefault(2 + 2 * k, []).append(x)
        if ld:
            for k, g in enumerate(ldW(i % 4)):
                fill.setdefault(k, []).extend(g)
            for k, g in enumerate(ldH(i % 4)):
                fill.setdefault(4 * k + 3, []).extend(g)
        for x in interleave(mf, fill):
            a(x)
    a("s_mov_b32 s%d, 6" % s_cnt)
    a.raw(".p2align 6")
    a.label("L_g2loop")
    for i in range(4):
        it(i, True, True, 32)
    a("s_sub_u32 s%d, s%d, 1" % (s_cnt, s_cnt))
    a("s_cmp_lg_u32 s%d, 0" % s_cnt)
    a("s_cbranch_scc1 L_g2loop")
    for p in range(4):
        a("s_mov_b32 s5, %d" % (p * 16384))
        a("buffer_load_dwordx4 %s, v%d, s[%d:%d], s5 offen" % (vr(vXS + 4 * p, 4), vE, sX, sX + 3))
        a("buffer_load_dwordx4 %s, v%d, s[%d:%d], s5 offen" % (vr(vXS + 16 + 4 * p, 4), vE, sS, sS + 3))
    for i, vm in ((24, 32 + 8), (25, 20 + 8), (26, 8 + 8), (27, 0 + 8)):
        it(i, False, i < 27, vm)
    stamp(a, cfg, 2)
    RS = 272
    a("s_barrier")
    a("v_and_b32 v%d, 15, v%d" % (vT0, vL))
    a("v_mul_u32_u24 v%d, %d, v%d" % (vT0, RS, vT0))
    a("v_lshl_add_u32 v%d, v%d, 4, v%d" % (vT0, vG, vT0))
    a("s_mul_i32 s5, s%d, %d" % (s_w, 128 * RS))
    a("v_add_u32 v%d, s5, v%d" % (vT0, vT0))
    a("s_nop 4")
    for xi in range(8):
        for dt in range(4):
            a("ds_write_b128 v%d, %s offset:%d" % (vT0, ar(acc(dt, xi), 4), xi * 16 * RS + dt * 64))
    a("v_lshrrev_b32 v%d, 3, v%d" % (vT1, vL))
    a("v_mul_u32_u24 v%d, %d, v%d" % (vT1, RS, vT1))
    a("v_and_b32 v%d, 7, v%d" % (vT2, vL))
    a("v_lshl_add_u32 v%d, v%d, 5, v%d" % (vT1, vT2, vT1))
    a("s_mul_i32 s5, s%d, %d" % (s_w, 32 * RS))
    a("v_add_u32 v%d, s5, v%d" % (vT1, vT1))
    a("v_add_u32 v%d, %d, v%d" % (vT2, 2 * 128 * RS, vT1))
    a("s_mov_b32 s40, 0x%x" % f2u(-math.log2(math.e))); a("s_mov_b32 s41, s40")
    a("s_mov_b32 s42, 1.0"); a("s_mov_b32 s43, 1.0")
    a("s_mov_b32 s44, 0xffff0000")
    a("s_waitcnt lgkmcnt(0)")
    a("s_barrier")
    rb = 96
    for p in range(4):
        for k in range(4):
            for q in range(2):
                a("ds_read_b128 %s, v%d offset:%d" % (vr(rb + p * 32 + k * 8 + q * 4, 4), vT1 if k < 2 else vT2, (k & 1) * 128 * RS + p * 8 * RS + q * 16))
    for p in range(4):
        b = rb + p * 32
        a("s_waitcnt lgkmcnt(%d) vmcnt(%d)" % (min(15, (3 - p) * 8), 6 - 2 * p + p))
        for q in range(4):
            a("v_pk_add_f32 %s, %s, %s" % (vr(b + 2 * q, 2), vr(b + 2 * q, 2), vr(b + 8 + 2 * q, 2)))
        for q in range(4):
            a("v_pk_add_f32 %s, %s, %s" % (vr(b + 16 + 2 * q, 2), vr(b + 16 + 2 * q, 2), vr(b + 24 + 2 * q, 2)))
        for q in range(4):
            a("v_pk_add_f32 %s, %s, %s" % (vr(b + 2 * q, 2), vr(b + 2 * q, 2), vr(b + 16 + 2 * q, 2)))
        T = b + 8; S = b + 16; X = b + 24
        for q in range(4):
            a("v_pk_mul_f32 %s, %s, s[40:41]" % (vr(T + 2 * q, 2), vr(b + 2 * q, 2)))
        for q in range(8):
            a("v_exp_f32 v%d, v%d" % (T + q, T + q))
        for q in range(4):
            a("v_lshlrev_b32 v%d, 16, v%d" % (S + 2 * q, vXS + 16 + 4 * p + q))
            a("v_and_b32 v%d, s44, v%d" % (S + 2 * q + 1, vXS + 16 + 4 * p + q))
        for q in range(4):
            a("v_pk_add_f32 %s, %s, s[42:43]" % (vr(T + 2 * q, 2), vr(T + 2 * q, 2)))
        for q in range(8):
            a("v_rcp_f32 v%d, v%d" % (T + q, T + q))
        for q in range(4):
            a("v_lshlrev_b32 v%d, 16, v%d" % (X + 2 * q, vXS + 4 * p + q))
            a("v_and_b32 v%d, s44, v%d" % (X + 2 * q + 1, vXS + 4 * p + q))
        for q in range(4):
            a("v_pk_mul_f32 %s, %s, %s" % (vr(b + 2 * q, 2), vr(b + 2 * q, 2), vr(T + 2 * q, 2)))
        for q in range(4):
            a("v_pk_fma_f32 %s, %s, %s, %s" % (vr(b + 2 * q, 2), vr(b + 2 * q, 2), vr(S + 2 * q, 2), vr(X + 2 * q, 2)))
        for q in range(4):
            a("v_cvt_pk_bf16_f32 v%d, v%d, v%d" % (T + q, b + 2 * q, b + 2 * q + 1))
        a("s_mov_b32 s5, %d" % (p * 16384))
        a("buffer_store_dwordx4 %s, v%d, s[%d:%d], s5 offen" % (vr(T, 4), vE, sO, sO + 3))
    stamp(a, cfg, 3)
    stamps_out(a, cfg, 4, 36, 2, vT0, 1 << 18)
    a.label("L_kc_exit")
    a("s_endpgm")
    return 256 + 128, 256, 4 * 128 * RS, 256
```

```python
import re
REG = re.compile(r"\b([vas])(?:(\d+)|\[(\d+):(\d+)\])")
TRANS = ("v_exp_f32", "v_log_f32", "v_rcp_f32", "v_rsq_f32", "v_sqrt_f32", "v_sin_f32", "v_cos_f32")
def regs(tok):
    out = []
    for m in REG.finditer(tok):
        p = m.group(1)
        if m.group(2) is not None:
            out.append((p, int(m.group(2))))
        else:
            out += [(p, i) for i in range(int(m.group(3)), int(m.group(4)) + 1)]
    if "vcc" in tok: out.append(("s", "vcc"))
    if re.search(r"\bm0\b", tok): out.append(("s", "m0"))
    return out
def parse(line):
    l = line.split(";")[0].strip()
    if not l or l.endswith(":") or l.startswith("."):
        return None
    sp = l.split(None, 1)
    op = sp[0]
    ops = [x.strip() for x in sp[1].split(",")] if len(sp) > 1 else []
    d = dict(op=op, w=[], r=[], kind="other", srcc=[], ab=[])
    if op.startswith("v_mfma"):
        d["kind"] = "mfma"; d["w"] = regs(ops[0]); d["ab"] = regs(ops[1]) + regs(ops[2]); d["srcc"] = regs(ops[3]); d["r"] = d["ab"] + d["srcc"]
        d["passes"] = 8 if "32x32" in op else 4
    elif op.startswith("v_permlane") and "swap" in op:
        d["kind"] = "valu"; d["perm"] = True; d["w"] = regs(ops[0]) + regs(ops[1]); d["r"] = list(d["w"])
    elif op.startswith("v_swap"):
        d["kind"] = "valu"; d["w"] = regs(ops[0]) + regs(ops[1]); d["r"] = list(d["w"])
    elif op.startswith("v_cmp"):
        d["kind"] = "valu"; d["w"] = regs(ops[0]); d["r"] = sum((regs(x) for x in ops[1:]), [])
    elif op.startswith("v_"):
        d["kind"] = "valu"; d["w"] = regs(ops[0]); d["r"] = sum((regs(x) for x in ops[1:]), [])
        if op.startswith(("v_fmac", "v_dot2c", "v_writelane")): d["r"] += d["w"]
        if op.startswith(TRANS): d["trans"] = True
        if "dpp" in op or "row_" in l or "quad_perm" in l: d["dpp"] = True
        if op.startswith(("v_readlane", "v_readfirstlane")): d["rl"] = True
        if op.startswith("v_dot"): d["dot"] = True
    elif op.startswith(("buffer_", "global_")):
        d["kind"] = "vmem"
        allr = [regs(x) for x in ops]
        if " lds" in l or op.startswith("global_load_lds"):
            d["r"] = sum(allr, []) + [("s", "m0")]; d["ldsdma"] = True
        elif "load" in op:
            d["w"] = allr[0]; d["r"] = sum(allr[1:], [])
            if "d16" in op: d["r"] += allr[0]
        elif "store" in op:
            d["r"] = sum(allr, [])
            if op.endswith(("x3", "x4")): d["wide"] = allr[0] if op.startswith("buffer") else allr[1]
        else:
            d["r"] = sum(allr, [])
            if "sc0" in l and "atomic" in op: d["w"] = allr[0]
    elif op.startswith("ds_"):
        d["kind"] = "ds"
        allr = [regs(x) for x in ops]
        if "read" in op or "permute" in op or "swizzle" in op:
            d["w"] = allr[0]; d["r"] = sum(allr[1:], [])
        else:
            d["r"] = sum(allr, [])
    elif op.startswith("s_nop"):
        d["kind"] = "nop"; d["n"] = int(ops[0], 0) + 1
    elif op.startswith("s_"):
        d["kind"] = "salu"
        if ops and not op.startswith(("s_cmp", "s_cbranch", "s_branch", "s_waitcnt", "s_barrier", "s_sleep", "s_setprio", "s_endpgm", "s_bitcmp")):
            d["w"] = regs(ops[0]); d["r"] = sum((regs(x) for x in ops[1:]), [])
        else:
            d["r"] = sum((regs(x) for x in ops), [])
    return d
def need(p, c):
    n = 0
    pw = set(p["w"]); cr = set(c["r"]); cw = set(c["w"])
    if p["kind"] == "valu":
        vw = {x for x in pw if x[0] in "va"}; sw = {x for x in pw if x[0] == "s"}
        if c["kind"] == "mfma" and vw & cr: n = max(n, 3 if p.get("dot") else 2)
        if c["kind"] == "valu":
            if p.get("trans") and not c.get("trans") and vw & cr: n = max(n, 1)
            if p.get("trans") and c.get("trans") and vw & cr: n = max(n, 1)
            if (c.get("perm") or c.get("dpp")) and vw & cr: n = max(n, 2)
            if c.get("rl") and vw & cr: n = max(n, 1)
            if sw & cr: n = max(n, 4 if c["op"].startswith(("v_readlane", "v_writelane")) else 2)
            if p.get("dot") and (vw & (cr | cw)):
                same = p["op"] == c["op"]
                if not (same and (vw & cr) <= set(c["w"]) and not (vw & set(c["r"][:-len(c["w"])]))): n = max(n, 3)
        if c["kind"] in ("vmem", "ds") and p.get("dot") and vw & cr: n = max(n, 3)
        if c["kind"] == "vmem" and sw & cr: n = max(n, 5)
    if p["kind"] == "mfma":
        P = p["passes"]
        big = {4: 8, 8: 12}[P]; ov = {4: 6, 8: 10}[P]; war = {4: 3, 8: 7}[P]
        if c["kind"] == "mfma":
            if pw & set(c["ab"]): n = max(n, big)
            if pw & set(c["srcc"]):
                if not (c["srcc"] == p["w"] and c["passes"] == P): n = max(n, ov)
            elif pw & cw: n = max(n, ov)
        elif c["kind"] in ("valu", "vmem", "ds"):
            if pw & (cr | cw): n = max(n, big)
            if c["kind"] == "valu" and set(p["srcc"]) & cw: n = max(n, war)
    if p["kind"] == "vmem" and p.get("wide"):
        if set(p["wide"]) & cw: n = max(n, 2)
    if p["kind"] == "salu" and ("s", "m0") in pw and (c.get("ldsdma") or c["op"].startswith("v_writelane")): n = max(n, 1)
    return n
def pad(lines):
    out = []
    hist = []
    added = 0
    for line in lines:
        c = parse(line)
        if c is None:
            out.append(line); continue
        req = 0
        if c["kind"] != "nop":
            for p, dist in hist:
                k = need(p, c) - dist
                if k > req: req = k
        if req > 0:
            out.append("    s_nop %d" % (req - 1)); added += req
            hist = [(p, d + req) for p, d in hist]
        out.append(line)
        step = c["n"] if c["kind"] == "nop" else 1
        hist = [(p, d + step) for p, d in hist if d + step < 14]
        if c["kind"] != "nop":
            hist.append((c, 0))
    return out, added
```

```python
from asmlib import *
from g1 import WS_XN, WS_DBG, stamp, stamps_out
import struct
f2u = lambda x: struct.unpack("<I", struct.pack("<f", x))[0]

def wave_allreduce(a, regs, tmp):
    for ror in (8, 4, 2, 1):
        for r in regs:
            a("v_add_f32_dpp v%d, v%d, v%d row_ror:%d row_mask:0xf bank_mask:0xf" % (r, r, r, ror))
        if len(regs) < 3:
            a("s_nop 1")
    for r in regs:
        a("v_mov_b32 v%d, v%d" % (tmp, r))
        a("s_nop 1")
        a("v_permlane16_swap_b32 v%d, v%d" % (tmp, r))
        a("s_nop 0")
        a("v_add_f32 v%d, v%d, v%d" % (r, r, tmp))
        a("v_mov_b32 v%d, v%d" % (tmp, r))
        a("s_nop 1")
        a("v_permlane32_swap_b32 v%d, v%d" % (tmp, r))
        a("s_nop 0")
        a("v_add_f32 v%d, v%d, v%d" % (r, r, tmp))

def gen_ka(a, cfg):
    a("s_cmp_ge_u32 s2, 256")
    a("s_cbranch_scc1 L_ka_exit")
    a("s_load_dwordx2 s[4:5], s[0:1], 0")
    a("s_load_dwordx2 s[36:37], s[0:1], 72")
    stamp(a, cfg, 0)
    vL, vT, vO = 1, 2, 3
    a("v_and_b32 v%d, 63, v0" % vL)
    a("v_lshrrev_b32 v%d, 6, v0" % vT)
    a("s_lshl_b32 s3, s2, 3")
    a("v_lshl_add_u32 v%d, v%d, 1, s3" % (vT, vT))
    a("v_lshlrev_b32 v4, 11, v%d" % vT)
    a("v_lshl_add_u32 v4, v%d, 4, v4" % vL)
    a("v_lshrrev_b32 v5, 8, v%d" % vT)
    a("v_lshlrev_b32 v5, 19, v5")
    a("v_and_b32 v6, 255, v%d" % vT)
    a("v_lshl_add_u32 v5, v6, 6, v5")
    a("v_lshrrev_b32 v6, 2, v%d" % vL)
    a("v_lshl_add_u32 v5, v6, 14, v5")
    a("v_and_b32 v6, 3, v%d" % vL)
    a("v_lshl_add_u32 v5, v6, 4, v5")
    a("s_waitcnt lgkmcnt(0)")
    srd(a, 8, 4, 5, 4 << 20)
    srd(a, 12, 36, 37, 4 << 20, WS_XN)
    for r in range(2):
        for h in range(2):
            a("buffer_load_dwordx4 %s, v4, s[8:11], 0 offen offset:%d" % (vr(8 + r * 8 + h * 4, 4), r * 2048 + h * 1024))
    a("s_mov_b32 s16, 0xffff0000")
    a("s_mov_b32 s17, 0x%x" % f2u(1.0 / 1024))
    a("s_mov_b32 s18, 0x%x" % f2u(1e-5))
    a("s_mov_b32 s19, 0x40000")
    X = 32
    for r in range(2):
        a("s_waitcnt vmcnt(%d)" % (2 - 2 * r))
        for i in range(8):
            a("v_lshlrev_b32 v%d, 16, v%d" % (X + r * 16 + 2 * i, 8 + r * 8 + i))
            a("v_and_b32 v%d, s16, v%d" % (X + r * 16 + 2 * i + 1, 8 + r * 8 + i))
        S = 24 + r * 4
        a("v_pk_add_f32 %s, %s, %s" % (vr(S, 2), vr(X + r * 16, 2), vr(X + r * 16 + 2, 2)))
        a("v_pk_mul_f32 %s, %s, %s" % (vr(S + 2, 2), vr(X + r * 16, 2), vr(X + r * 16, 2)))
        a("v_pk_fma_f32 %s, %s, %s, %s" % (vr(S + 2, 2), vr(X + r * 16 + 2, 2), vr(X + r * 16 + 2, 2), vr(S + 2, 2)))
        for i in range(2, 8):
            a("v_pk_add_f32 %s, %s, %s" % (vr(S, 2), vr(S, 2), vr(X + r * 16 + 2 * i, 2)))
            a("v_pk_fma_f32 %s, %s, %s, %s" % (vr(S + 2, 2), vr(X + r * 16 + 2 * i, 2), vr(X + r * 16 + 2 * i, 2), vr(S + 2, 2)))
        a("v_add_f32 v%d, v%d, v%d" % (S, S, S + 1))
        a("v_add_f32 v%d, v%d, v%d" % (S + 2, S + 2, S + 3))
    a("s_nop 1")
    wave_allreduce(a, [24, 26, 28, 30], 7)
    for r in range(2):
        S = 24 + r * 4
        a("v_mul_f32 v%d, s17, v%d" % (S, S))
        a("v_mul_f32 v%d, s17, v%d" % (S + 2, S + 2))
        a("v_fma_f32 v%d, -v%d, v%d, v%d" % (S + 2, S, S, S + 2))
        a("v_max_f32 v%d, 0, v%d" % (S + 2, S + 2))
        a("v_add_f32 v%d, s18, v%d" % (S + 2, S + 2))
        a("v_rsq_f32 v%d, v%d" % (S + 2, S + 2))
        a("s_nop 0")
        a("v_mul_f32 v%d, -v%d, v%d" % (S, S, S + 2))
        a("v_mov_b32 v%d, v%d" % (S + 3, S + 2))
        a("v_mov_b32 v%d, v%d" % (S + 1, S))
        for i in range(8):
            a("v_pk_fma_f32 %s, %s, %s, %s" % (vr(X + r * 16 + 2 * i, 2), vr(X + r * 16 + 2 * i, 2), vr(S + 2, 2), vr(S, 2)))
        for i in range(8):
            a("v_cvt_pk_bf16_f32 v%d, v%d, v%d" % (8 + r * 8 + i, X + r * 16 + 2 * i, X + r * 16 + 2 * i + 1))
        a("buffer_store_dwordx4 %s, v5, s[12:15], 0 offen offset:%d" % (vr(8 + r * 8, 4), r * 64))
        a("buffer_store_dwordx4 %s, v5, s[12:15], s19 offen offset:%d" % (vr(8 + r * 8 + 4, 4), r * 64))
    stamp(a, cfg, 1)
    stamps_out(a, cfg, 2, 36, 2, 2, 2 << 18)
    a.label("L_ka_exit")
    a("s_endpgm")
    return 64, 64, 0
```

```python
from asmlib import *
from g1 import WS_XN, WS_H, WS_X1, WS_V, WS_S, WS_DBG, stamp, stamps_out
import tables, hazard, struct
f2u = lambda x: struct.unpack("<I", struct.pack("<f", x))[0]
WS_ST = 33 << 20

def merge(*streams):
    streams = [s for s in streams if s]
    n = [len(s) for s in streams]
    pos = [0] * len(streams)
    out = []
    tot = sum(n)
    for _ in range(tot):
        best = min((i for i in range(len(streams)) if pos[i] < n[i]), key=lambda i: (pos[i] + 0.5) / n[i])
        out.append(streams[best][pos[best]]); pos[best] += 1
    return out

def mfma(d, A, B, c=None):
    return "v_mfma_f32_16x16x32_bf16 %s, %s, %s, %s" % (vr(d, 4), A, B, "0" if c is None else vr(c, 4))
V4 = lambda b: vr(b, 4)
A4 = lambda b: ar(b, 4)
def cvt(d, x, y):
    return "v_cvt_pk_bf16_f32 v%d, v%d, v%d" % (d, x, y)
def cmul(re, im, c, s, t, conj_out=False):
    l = []
    for p in range(4):
        l.append("v_mul_f32 v%d, v%d, v%d" % (t + p, im + p, s + p))
        l.append("v_mul_f32 v%d, v%d, v%d" % (t + 4 + p, re + p, s + p))
    for p in range(4):
        l.append("v_fma_f32 v%d, v%d, v%d, -v%d" % (re + p, re + p, c + p, t + p))
        if conj_out:
            l.append("v_fma_f32 v%d, -v%d, v%d, -v%d" % (im + p, im + p, c + p, t + 4 + p))
        else:
            l.append("v_fma_f32 v%d, v%d, v%d, v%d" % (im + p, im + p, c + p, t + 4 + p))
    return l
def epos(E, inv, j):
    return E + (4 * (inv >> 2) + j) * 4 + (inv & 3)
def exchange(E):
    l1, l2 = [], []
    for j in range(4):
        for jj in range(4):
            R = [E + (4 * g + j) * 4 + jj for g in range(4)]
            l1.append("v_permlane32_swap_b32 v%d, v%d" % (R[0], R[2]))
            l1.append("v_permlane32_swap_b32 v%d, v%d" % (R[1], R[3]))
            l2.append("v_permlane16_swap_b32 v%d, v%d" % (R[0], R[1]))
            l2.append("v_permlane16_swap_b32 v%d, v%d" % (R[2], R[3]))
    return l1 + l2
def planar_pack(d, re, im):
    return [cvt(d, re, re + 1), cvt(d + 1, re + 2, re + 3), cvt(d + 2, im, im + 1), cvt(d + 3, im + 2, im + 3)]

aA1, aBa, aAb, aAs, aA2, aBb, aBs, aBa3, aX = 0, 128, 160, 168, 176, 184, 192, 200, 232
vTw1, vTw3, vM = 16, 32, 48

def gen_spec(a0, cfg):
    a = Asm()
    ST = cfg.get("spst", "sc1")
    txt, tbytes = tables.asm_text("spec_tables")
    cfg.setdefault("_tables", []).append(txt)
    sX, sT, sX1, sV, sS, sWr, sWi, sDbg = 8, 12, 16, 20, 24, 28, 32, 40
    s_w, s_lds, s_q, s_p0 = 44, 45, 46, 47
    sMean = 64 if not cfg.get("stamps") else 84
    vL, vG, vN, vT0, vT1, vT2, vT3 = 1, 2, 3, 4, 5, 6, 7
    a("s_load_dwordx2 s[4:5], s[0:1], 0      ; x")
    a("s_load_dwordx4 s[48:51], s[0:1], 8    ; w_r, w_i")
    a("s_load_dwordx4 s[52:55], s[0:1], 64")
    stamp(a, cfg, 0)
    a("s_getpc_b64 s[6:7]")
    a.label("L_sp_pc")
    a("s_add_u32 s%d, s6, spec_tables-L_sp_pc" % sT)
    a("s_addc_u32 s%d, s7, 0" % (sT + 1))
    a("s_mov_b32 s%d, %d" % (sT + 2, tbytes))
    a("s_mov_b32 s%d, 0x20000" % (sT + 3))
    a("v_lshrrev_b32 v%d, 6, v0" % vT0)
    a("v_and_b32 v%d, 63, v0" % vL)
    a("v_readfirstlane_b32 s%d, v%d" % (s_w, vT0))
    a("v_lshrrev_b32 v%d, 4, v%d" % (vG, vL))
    a("v_and_b32 v%d, 15, v%d" % (vN, vL))
    vL16 = 8
    a("v_lshlrev_b32 v%d, 4, v%d" % (vL16, vL))
    def ldtab(q, dst):
        return ["s_mov_b32 s3, %d" % ((q >> 2) * 4096), "buffer_load_dwordx4 %s, v%d, s[%d:%d], s3 offen offset:%d" % (dst, vL16, sT, sT + 3, (q & 3) * 1024)]
    a("s_lshl_b32 s%d, s%d, 15" % (s_lds, s_w))
    a("s_and_b32 s%d, s2, 15" % s_q)
    a("s_lshr_b32 s%d, s2, 4" % s_p0)
    a("s_lshl_b32 s%d, s%d, 3" % (s_p0, s_p0))
    a("s_lshl_b32 s3, s%d, 1" % s_w)
    a("s_add_u32 s%d, s%d, s3" % (s_p0, s_p0))
    a("s_lshl_b32 s56, s%d, 4" % s_p0) if False else None
    s_n0 = 38
    a("s_lshl_b32 s%d, s%d, 4" % (s_n0, s_p0))
    a("s_add_u32 s%d, s%d, s%d" % (s_n0, s_n0, s_q))
    a("s_waitcnt lgkmcnt(0)")
    srd(a, sX, 4, 5, 4 << 20)
    for rho in range(16):
        e, i = rho >> 3, rho & 7
        a("s_lshl_b32 s3, s%d, 11" % s_n0)
        a("s_add_u32 s3, s3, %d" % ((16 * e + 256 * i) * 2048))
        a("s_add_u32 m0, s%d, %d" % (s_lds, rho * 2048))
        a("buffer_load_dwordx4 v%d, s[%d:%d], s3 offen lds" % (vL16, sX, sX + 3))
        a("buffer_load_dwordx4 v%d, s[%d:%d], s3 offen offset:1024 lds" % (vL16, sX, sX + 3))
    for q in range(8):
        for x in ldtab(q, A4(aBa + 4 * q)): a(x)
    for q in range(4):
        for x in ldtab(8 + q, A4(aAb + 4 * q)): a(x)
    for q in range(4):
        for x in ldtab(12 + q, V4(vTw1 + 4 * q)): a(x)
    srd(a, sX1, 54, 55, 4 << 20, WS_X1)
    srd(a, sV, 54, 55, 4 << 20, WS_V)
    srd(a, sS, 54, 55, 4 << 20, WS_S)
    srd(a, sWr, 48, 49, 2048 * 513 * 2)
    srd(a, sWi, 50, 51, 2048 * 513 * 2)
    srd(a, sDbg, 52, 53, 256)
    vRd, vTr = 9, 10
    a("v_add_u32 v%d, s%d, v%d" % (vRd, s_lds, vL16))
    a("v_lshl_add_u32 v%d, v%d, 3, s%d" % (vTr, vL, s_lds))
    vC, vS = 56, 60
    a("v_lshrrev_b32 v%d, 1, v%d" % (vT0, vG))
    a("v_lshlrev_b32 v%d, 4, v%d" % (vT1, vT0))
    a("v_and_b32 v%d, 1, v%d" % (vT2, vG))
    a("v_lshl_add_u32 v%d, v%d, 10, v%d" % (vT1, vT2, vT1))
    a("v_add_u32 v%d, s%d, v%d" % (vT1, s_n0, vT1))
    a("v_and_b32 v%d, 7, v%d" % (vT2, vL))
    a("s_mov_b32 s3, 0x%x" % f2u(1.0 / 2048))
    for jj in range(4):
        a("v_add_u32 v%d, %d, v%d" % (vT3, 256 * jj, vT1))
        a("v_mul_u32_u24 v%d, v%d, v%d" % (vT3, vT3, vT2))
        a("v_and_b32 v%d, 0x7ff, v%d" % (vT3, vT3))
        a("v_cvt_f32_u32 v%d, v%d" % (vT3, vT3))
        a("v_mul_f32 v%d, s3, v%d" % (vT3, vT3))
        a("v_cos_f32 v%d, v%d" % (vC + jj, vT3))
        a("v_sin_f32 v%d, v%d" % (vS + jj, vT3))
    vDel = 11
    a("v_lshrrev_b32 v%d, 3, v%d" % (vT1, vN))
    a("v_cmp_eq_u32 vcc, v%d, v%d" % (vT0, vT1))
    a("v_cndmask_b32 v%d, 0, 1.0, vcc" % vDel)
    vMask = 12
    a("v_cmp_eq_u32 vcc, 0, v%d" % vN)
    a("v_cndmask_b32 v%d, 0, 1.0, vcc" % vMask)
    a("s_mov_b64 s[36:37], vcc")
    Sb, Qb, Lb = 128, 144, 64
    for half in range(2):
        a("s_waitcnt vmcnt(%d)" % (16 + 16 * (1 - half)))
        for r in range(8):
            rho = 8 * half + r
            a("ds_read_b128 %s, v%d offset:%d" % (V4(Lb + 8 * r), vRd, rho * 2048))
            a("ds_read_b128 %s, v%d offset:%d" % (V4(Lb + 8 * r + 4), vRd, rho * 2048 + 1024))
        for r in range(8):
            rho = 8 * half + r
            a("s_waitcnt lgkmcnt(%d)" % (14 - 2 * r))
            a("v_mov_b32 v%d, 0" % (Sb + rho))
            a("v_mov_b32 v%d, 0" % (Qb + rho))
            for k in range(8):
                a("v_dot2c_f32_bf16 v%d, 0x3f803f80, v%d" % (Sb + rho, Lb + 8 * r + k))
                a("v_dot2c_f32_bf16 v%d, v%d, v%d" % (Qb + rho, Lb + 8 * r + k, Lb + 8 * r + k))
    for B in (Sb, Qb):
        for r in range(8):
            a("v_permlane32_swap_b32 v%d, v%d" % (B + r, B + r + 8))
    for B in (Sb, Qb):
        for r in range(8):
            a("v_add_f32 v%d, v%d, v%d" % (B + r, B + r, B + r + 8))
    for B in (Sb, Qb):
        for r in range(4):
            a("v_permlane16_swap_b32 v%d, v%d" % (B + r, B + r + 4))
    for B in (Sb, Qb):
        for r in range(4):
            a("v_add_f32 v%d, v%d, v%d" % (B + r, B + r, B + r + 4))
    for ror in (8, 4, 2, 1):
        for B in (Sb, Qb):
            for r in range(4):
                a("v_add_f32_dpp v%d, v%d, v%d row_ror:%d row_mask:0xf bank_mask:0xf" % (B + r, B + r, B + r, ror))
    a("s_mov_b32 s3, 0x%x" % f2u(1.0 / 1024))
    a("s_mov_b32 s4, 0x%x" % f2u(1e-5))
    a("s_mov_b32 s5, 0x%x" % f2u(-64.0))
    for r in range(4):
        a("v_mul_f32 v%d, s3, v%d" % (Sb + r, Sb + r))
        a("v_mul_f32 v%d, s3, v%d" % (Qb + r, Qb + r))
    for r in range(4):
        a("v_fma_f32 v%d, -v%d, v%d, v%d" % (Qb + r, Sb + r, Sb + r, Qb + r))
    for r in range(4):
        a("v_max_f32 v%d, 0, v%d" % (Qb + r, Qb + r))
    for r in range(4):
        a("v_add_f32 v%d, s4, v%d" % (Qb + r, Qb + r))
    for r in range(4):
        a("v_rsq_f32 v%d, v%d" % (Qb + r, Qb + r))
    for r in range(4):
        a("v_mul_f32 v%d, s5, v%d" % (Sb + 4 + r, Sb + r))
    for rho in range(16):
        a("v_readlane_b32 s%d, v%d, %d" % (sMean + rho, Sb + 4 + (rho & 3), 16 * (rho >> 2)))
    for r in range(4):
        a("v_mul_f32 v%d, v%d, v%d" % (Qb + 4 + r, vDel, Qb + r))
    for r in range(4):
        a("v_mul_f32 v%d, v%d, v%d" % (vC + r, vC + r, Qb + 4 + r))
        a("v_mul_f32 v%d, v%d, v%d" % (vS + r, vS + r, Qb + 4 + r))
    for r in range(4):
        a("v_cvt_pk_bf16_f32 v%d, v%d, v%d" % (vM + r, vC + r, vS + r))
        a("v_cvt_pk_bf16_f32 v%d, -v%d, v%d" % (vM + 4 + r, vS + r, vC + r))
    stamp(a, cfg, 1)
    E0, E1 = 128, 192
    Db = [64, 80]; D2 = 96; Pb = [56, 120]; Tt = 13 if False else None
    vTmp = 40
    def S0(r):
        xb = aX + 8 * (r % 3)
        return ["ds_read_b64_tr_b16 %s, v%d offset:%d" % (ar(xb + 4 * ks + 2 * jj, 2), vTr, r * 2048 + ks * 1024 + jj * 512) for ks in range(2) for jj in range(2)]
    def S1(r):
        xb = aX + 8 * (r % 3); D = Db[r % 2]
        return [mfma(D + 4 * nt, A4(xb), A4(aBa + 8 * nt)) for nt in range(4)] + [mfma(D + 4 * nt, A4(xb + 4), A4(aBa + 8 * nt + 4), D + 4 * nt) for nt in range(4)]
    def S2(r):
        D = Db[r % 2]; P = Pb[r % 2]
        l = ["v_fmac_f32 v%d, s%d, v%d" % (D + j, sMean + r, vMask) for j in range(4)]
        for t in (1, 0):
            l += cmul(D + 8 * t, D + 8 * t + 4, vTw1 + 8 * t, vTw1 + 8 * t + 4, vTmp)
            l += [cvt(P + 4 * t + j, D + 8 * t + j, D + 8 * t + 4 + j) for j in range(4)]
        return l
    def S3(r):
        P = Pb[r % 2]
        return [mfma(D2 + 8, A4(aAb), V4(P + 4)), mfma(D2 + 12, A4(aAb + 4), V4(P + 4)),
                mfma(D2, A4(aAb), V4(P)), mfma(D2 + 4, A4(aAb + 4), V4(P)),
                mfma(D2 + 16, A4(aAs), V4(P)), mfma(D2 + 20, A4(aAs + 4), V4(P))]
    def S4(r):
        l = [cvt(epos(E1, r, j), D2 + 8 + j, D2 + 12 + j) for j in range(4)]
        l += [cvt(epos(E0, r, j), D2 + j, D2 + 4 + j) for j in range(4)]
        l += ["\n".join(["s_mov_b64 exec, s[36:37]"] + [cvt(epos(E0, r, j), D2 + 16 + j, D2 + 20 + j) for j in range(4)] + ["s_mov_b64 exec, -1"])]
        return l
    a("s_waitcnt vmcnt(0)")
    for x in S0(0) + S0(1): a(x)
    a("s_waitcnt lgkmcnt(4)")
    for x in S1(0): a(x)
    for k in range(0, 17):
        if k + 2 < 16:
            for x in S0(k + 2): a(x)
            a("s_waitcnt lgkmcnt(4)")
        else:
            a("s_waitcnt lgkmcnt(0)")
        mf = (S3(k - 1) if k >= 1 else []) + (S1(k + 1) if k + 1 < 16 else [])
        va = (S2(k) if k < 16 else []) + (S4(k - 1) if k >= 1 else [])
        for x in (merge(mf, va) if k < 15 else mf + va): a(x)
    for x in exchange(E0) + exchange(E1): a(x)
    vSt = 13
    a("v_and_b32 v%d, 7, v%d" % (vT0, vL))
    a("v_lshlrev_b32 v%d, 19, v%d" % (vSt, vT0))
    a("v_lshrrev_b32 v%d, 3, v%d" % (vT0, vN))
    a("v_lshl_add_u32 v%d, v%d, 6, v%d" % (vSt, vT0, vSt))
    a("v_lshl_add_u32 v%d, v%d, 4, v%d" % (vSt, vG, vSt))
    a("s_lshl_b32 s3, s%d, 4" % s_q)
    a("s_add_u32 s3, s3, s%d" % s_p0)
    a("s_lshl_b32 s3, s3, 6")
    a("v_add_u32 v%d, s3, v%d" % (vSt, vSt))
    def final_stage(n, srcf, cre, cim, storef, Dbase, Obase):
        def M(i):
            D = Dbase + 8 * (i % 4)
            return [mfma(D, srcf(i), cre), mfma(D + 4, srcf(i), cim)]
        def Vv(i):
            D = Dbase + 8 * (i % 4); O = Obase + 4 * (i % 4)
            return planar_pack(O, D, D + 4) + storef(i, O)
        for x in M(0) + M(1): a(x)
        for i in range(n):
            for x in merge(M(i + 2) if i + 2 < n else [], Vv(i)): a(x)
    final_stage(32, lambda i: V4((E0, E1)[i & 1] + 4 * (i >> 1)), V4(vM), V4(vM + 4),
                lambda i, O: ["s_mov_b32 s3, %d\nbuffer_store_dwordx4 %s, v%d, s[%d:%d], s3 offen %s" % (i * 16384, V4(O), vSt, sX1, sX1 + 3, ST)], 64, 96)
    stamp(a, cfg, 2)
    s_ki, s_k2 = 38, 39
    a("s_and_b32 s%d, s2, 7" % s_ki)
    a("s_lshr_b32 s%d, s2, 3" % s_k2)
    a("s_lshl_b32 s%d, s%d, 2" % (s_k2, s_k2))
    a("s_add_u32 s%d, s%d, s%d" % (s_k2, s_k2, s_w))
    vW, vWl, vWp, vWpl = 14, 15, 56, 57
    a("s_lshl_b32 s3, s%d, 6" % s_k2)
    a("s_sub_u32 s4, 993, s3")
    a("s_sub_u32 s6, 992, s3")
    a("s_cmp_lt_u32 s%d, 8" % s_k2)
    a("s_cselect_b32 s4, s3, s4")
    a("s_cselect_b32 s6, s3, s6")
    a("s_cselect_b32 s39, 0x07060504, 0x01000302" if False else "s_cselect_b32 s57, 0, 3" if False else "s_cselect_b32 s5, 0, 3")
    s_sel = 7
    a("s_mov_b32 s%d, 0x01000302" % s_sel)
    a("s_cselect_b32 s%d, 0x07060504, s%d" % (s_sel, s_sel))
    a("s_cmp_eq_u32 s%d, 0" % s_k2)
    a("s_cselect_b32 s6, 512, s6")
    a("v_lshrrev_b32 v%d, 2, v%d" % (vT0, vL))
    a("v_and_b32 v%d, 3, v%d" % (vT1, vL))
    a("v_lshl_add_u32 v%d, v%d, 3, s%d" % (vT2, vT0, s_ki))
    a("v_mul_u32_u24 v%d, 1026, v%d" % (vT2, vT2))
    a("v_lshl_add_u32 v%d, v%d, 4, v%d" % (vT2, vT1, vT2))
    a("s_lshl_b32 s4, s4, 1")
    a("v_add_u32 v%d, s4, v%d" % (vW, vT2))
    a("v_xor_b32 v%d, s5, v%d" % (vT1, vT1))
    a("v_lshlrev_b32 v%d, 4, v%d" % (vT1, vT1))
    a("v_lshl_add_u32 v%d, v%d, 10, v%d" % (vT1, vT0, vT1))
    a("v_add_u32 v%d, s%d, v%d" % (vWl, s_lds, vT1))
    a("v_lshl_add_u32 v%d, v%d, 3, s%d" % (vT2, vL, s_ki))
    a("v_mul_u32_u24 v%d, 1026, v%d" % (vT2, vT2))
    a("s_lshl_b32 s6, s6, 1")
    a("v_add_u32 v%d, s6, v%d" % (vWp, vT2))
    a("v_lshlrev_b32 v%d, 10, v%d" % (vT2, vN))
    a("v_lshl_add_u32 v%d, v%d, 6, v%d" % (vT2, vG, vT2))
    a("v_add_u32 v%d, s%d, v%d" % (vWpl, s_lds, vT2))
    Wraw = 128; Wp = 192; aW1 = 128; aW1b = 184
    def aW(i):
        return aW1 + i if i < 48 else aW1b + (i - 48)
    def w_loads():
        l = []
        for arr, sd in ((0, sWr), (1, sWi)):
            for u in range(16):
                l.append("s_mov_b32 s3, %d" % (128 * u * 1026))
                l.append("buffer_load_dwordx4 %s, v%d, s[%d:%d], s3 offen" % (V4(Wraw + 64 * arr + 4 * u), vW, sd, sd + 3))
        for arr, sd in ((0, sWr), (1, sWi)):
            for u in range(4):
                l.append("s_mov_b32 s3, %d" % (512 * u * 1026))
                l.append("buffer_load_ushort v%d, v%d, s[%d:%d], s3 offen" % (64 + 4 * arr + u, vWp, sd, sd + 3))
        return l
    def w_stage(after):
        l = []
        for arr in range(2):
            for u in range(16):
                k = arr * 16 + u
                l.append("s_waitcnt vmcnt(%d)" % min(63, 31 - k + 8 + after))
                src = Wraw + 4 * k; dst = 72 + 4 * (k % 4)
                for j in range(4):
                    l.append("v_perm_b32 v%d, v%d, v%d, s%d" % (dst + j, src + j, src + 3 - j, s_sel))
                l.append("ds_write_b128 v%d, %s offset:%d" % (vWl, V4(dst), arr * 16384 + u * 64))
        l.append("s_waitcnt vmcnt(%d)" % after)
        for arr in range(2):
            for u in range(4):
                l.append("ds_write_b16 v%d, v%d offset:%d" % (vWpl, 64 + 4 * arr + u, arr * 16384 + u * 256))
        l.append("v_lshrrev_b32 v%d, 2, v%d" % (vT2, vL))
        l.append("v_lshlrev_b32 v%d, 6, v%d" % (vT2, vT2))
        l.append("v_and_b32 v%d, 3, v%d" % (vT3, vL))
        l.append("v_lshl_add_u32 v%d, v%d, 3, v%d" % (vT2, vT3, vT2))
        l.append("v_add_u32 v%d, s%d, v%d" % (vT2, s_lds, vT2))
        l.append("s_waitcnt lgkmcnt(0)")
        for t in range(2):
            for kp in range(16):
                for arr in range(2):
                    d = vr(Wp + 4 * kp + 2 * arr, 2) if t == 0 else ar(aW(4 * kp + 2 * arr), 2)
                    l.append("ds_read_b64_tr_b16 %s, v%d offset:%d" % (d, vT2, arr * 16384 + kp * 1024 + t * 32))
        l.append("s_waitcnt lgkmcnt(0)")
        return l
    nsync = [0]
    def sync(off, between):
        lab = "L_sp_poll%d" % nsync[0]; lab2 = "L_sp_done%d" % nsync[0]; lab3 = "L_sp_skip%d" % nsync[0]
        nsync[0] += 1
        a("s_waitcnt vmcnt(0)")
        a("s_barrier")
        a("s_cmp_lg_u32 s%d, 0" % s_w)
        a("s_cbranch_scc1 %s" % lab3)
        a("v_mov_b32 v%d, 1" % vT0)
        a("v_mov_b32 v%d, %d" % (vT1, off))
        a("s_mov_b64 exec, 1")
        a("buffer_atomic_add v%d, v%d, s[%d:%d], 0 offen sc1" % (vT0, vT1, sDbg, sDbg + 3))
        a("s_mov_b64 exec, -1")
        a.label(lab3)
        for x in between: a(x)
        a("s_cmp_lg_u32 s%d, 0" % s_w)
        a("s_cbranch_scc1 %s" % lab2)
        a("v_mov_b32 v%d, %d" % (vT1, off))
        a("s_mov_b32 s3, 0")
        a.label(lab)
        a("buffer_load_dword v%d, v%d, s[%d:%d], 0 offen sc1" % (vT0, vT1, sDbg, sDbg + 3))
        a("s_add_u32 s3, s3, 1")
        a("s_waitcnt vmcnt(0)")
        a("v_readfirstlane_b32 s4, v%d" % vT0)
        a("s_cmp_ge_u32 s3, 0x40000")
        a("s_cbranch_scc1 %s_out" % lab)
        a("s_cmp_ge_u32 s4, 32")
        a("s_cbranch_scc1 %s_out" % lab)
        a("s_sleep 2")
        a("s_branch %s" % lab)
        a.label(lab + "_out")
        a("buffer_inv sc1")
        a("s_waitcnt vmcnt(0)")
        a.label(lab2)
        a("s_barrier")
    pre = w_loads()
    for q in range(32): pre += ldtab(16 + q, A4(aA1 + 4 * q))
    for q in range(2): pre += ldtab(48 + q, A4(aA2 + 4 * q))
    pre += w_stage(34)
    sync(0, pre)
    stamp(a, cfg, 3)
    a("s_lshl_b32 s5, s%d, 19" % s_ki)
    a("s_lshl_b32 s6, s%d, 15" % s_k2)
    a("s_add_u32 s5, s5, s6")
    def dma32k(srdb, soff):
        for c in range(8):
            a("s_add_u32 s3, s%d, %d" % (soff, c * 4096))
            a("s_add_u32 m0, s%d, %d" % (s_lds, c * 4096))
            for k in range(4):
                a("buffer_load_dwordx4 v%d, s[%d:%d], s3 offen offset:%d lds" % (vL16, srdb, srdb + 3, k * 1024))
    dma32k(sX1, 5)
    a("v_lshrrev_b32 v%d, 1, v%d" % (vT0, vN))
    a("v_lshlrev_b32 v%d, 15, v%d" % (vSt, vT0))
    a("v_and_b32 v%d, 1, v%d" % (vT0, vN))
    a("v_lshl_add_u32 v%d, v%d, 6, v%d" % (vSt, vT0, vSt))
    a("v_lshl_add_u32 v%d, v%d, 4, v%d" % (vSt, vG, vSt))
    a("s_lshl_b32 s3, s%d, 7" % s_ki)
    a("s_lshl_b32 s4, s%d, 11" % s_k2)
    a("s_add_u32 s3, s3, s4")
    a("v_add_u32 v%d, s3, v%d" % (vSt, vSt))
    a("s_mov_b32 s6, 0xffff0000")
    Ea, Eb = 64, 128
    def first_stage(n, ldsoff, cre, cim, Ef, Dbase):
        def R(i):
            xb = aX + 4 * (i % 6)
            return ["ds_read_b64_tr_b16 %s, v%d offset:%d" % (ar(xb + 2 * h, 2), vRd, ldsoff + i * 1024 + 8 * h) for h in range(2)]
        def M(i):
            D = Dbase + 8 * (i % 3); xb = aX + 4 * (i % 6)
            return [mfma(D, cre(i), A4(xb)), mfma(D + 4, cim(i), A4(xb))]
        def Vv(i):
            D = Dbase + 8 * (i % 3)
            return [cvt(Ef(i, j), D + j, D + 4 + j) for j in range(4)]
        for i in range(min(5, n)):
            for x in R(i): a(x)
        a("s_waitcnt lgkmcnt(6)")
        for x in M(0) + M(1): a(x)
        for i in range(n):
            if i + 5 < n:
                for x in R(i + 5): a(x)
            if i + 2 < n:
                a("s_waitcnt lgkmcnt(%d)" % (2 * (min(n - 1, i + 5) - (i + 2))))
            for x in merge(M(i + 2) if i + 2 < n else [], Vv(i)): a(x)
    for t in range(2):
        if t == 0:
            a("s_waitcnt vmcnt(16)")
        first_stage(16, t * 16384, lambda i: A4(aA1 + 8 * i), lambda i: A4(aA1 + 8 * i + 4), lambda i, j: epos(Ea, i, j), 16)
        for x in exchange(Ea): a(x)
        if t == 0:
            a("s_waitcnt vmcnt(0)")
        D2b = lambda i: 16 + 8 * (i % 3)
        D3b = lambda i: 40 + 8 * (i % 2)
        Pm = lambda i: 56 + 4 * (i % 2)
        def M1(i):
            return [mfma(D2b(i), A4(aA2), V4(Ea + 4 * i)), mfma(D2b(i) + 4, A4(aA2 + 4), V4(Ea + 4 * i))]
        def V1(i):
            D = D2b(i); wr = Ea + 4 * i; wi = Wp + 4 * i; w = Wp + 4 * i
            l = []
            if t == 1:
                l += ["v_accvgpr_read_b32 v%d, a%d" % (w + j, aW(4 * i + j)) for j in range(4)]
            l += ["v_lshlrev_b32 v%d, 16, v%d" % (wr, w), "v_and_b32 v%d, s6, v%d" % (wr + 1, w),
                  "v_lshlrev_b32 v%d, 16, v%d" % (wr + 2, w + 1), "v_and_b32 v%d, s6, v%d" % (wr + 3, w + 1),
                  "v_lshlrev_b32 v%d, 16, v%d" % (wi, w + 2), "v_and_b32 v%d, s6, v%d" % (wi + 1, w + 2),
                  "v_lshlrev_b32 v%d, 16, v%d" % (wi + 2, w + 3), "v_and_b32 v%d, s6, v%d" % (wi + 3, w + 3)]
            l += cmul(D, D + 4, wr, wi, D3b(i), conj_out=True)
            l += planar_pack(Pm(i), D, D + 4)
            return l
        def M2(i):
            return [mfma(D3b(i), A4(aA1 + 8 * i), V4(Pm(i))), mfma(D3b(i) + 4, A4(aA1 + 8 * i + 4), V4(Pm(i)))]
        def V2(i):
            return [cvt(epos(Eb, i, j), D3b(i) + j, D3b(i) + 4 + j) for j in range(4)]
        for x in M1(0) + M1(1): a(x)
        for i in range(17):
            mf = (M2(i - 1) if i >= 1 else []) + (M1(i + 2) if i + 2 < 16 else [])
            va = (V1(i) if i < 16 else []) + (V2(i - 1) if i >= 1 else [])
            for x in mf[:2]: a(x)
            for x in merge(mf[2:], va): a(x)
        for x in exchange(Eb): a(x)
        final_stage(16, lambda i: V4(Eb + 4 * i), A4(aA2), A4(aA2 + 4),
                    lambda i, O: ["s_mov_b32 s3, %d\nbuffer_store_dwordx4 %s, v%d, s[%d:%d], s3 offen %s" % (i * 262144 + t * 1024, V4(O), vSt, sV, sV + 3, ST)], 16, 48)
    stamp(a, cfg, 4)
    pre = []
    for q in range(4): pre += ldtab(50 + q, A4(aBb + 4 * q))
    for q in range(8): pre += ldtab(54 + q, A4(aBa3 + 4 * q))
    for q in range(4): pre += ldtab(62 + q, V4(vTw3 + 4 * q))
    s_n0 = 38
    pre += ["s_lshl_b32 s%d, s%d, 4" % (s_n0, s_p0), "s_add_u32 s%d, s%d, s%d" % (s_n0, s_n0, s_q),
            "v_lshrrev_b32 v%d, 3, v%d" % (vT2, vN),
            "v_and_b32 v%d, 7, v%d" % (vT3, vN),
            "v_lshlrev_b32 v%d, 8, v%d" % (vT3, vT3),
            "v_lshl_add_u32 v%d, v%d, 4, v%d" % (vT3, vT2, vT3),
            "v_add_u32 v%d, s%d, v%d" % (vT3, s_n0, vT3),
            "v_cmp_eq_u32 vcc, 0, v%d" % vT2,
            "s_mov_b32 s6, 0x%x" % f2u(2.0 ** -21),
            "v_mov_b32 v16, s6",
            "v_cndmask_b32 v17, 0, v16, vcc",
            "v_cndmask_b32 v18, v16, 0, vcc" if False else "v_sub_f32 v18, v16, v17",
            "s_mov_b32 s6, 0x%x" % f2u(1.0 / 2048)]
    for u in range(2):
        pre += ["v_lshl_add_u32 v19, v%d, 1, %d" % (vG, u),
                "v_mul_u32_u24 v19, v19, v%d" % vT3,
                "v_and_b32 v19, 0x7ff, v19",
                "v_cvt_f32_u32 v19, v19",
                "v_mul_f32 v19, s6, v19",
                "v_cos_f32 v20, v19",
                "v_sin_f32 v21, v19",
                "v_mul_f32 v22, v20, v17", "v_mul_f32 v23, v20, v18",
                "v_mul_f32 v24, v21, v17", "v_mul_f32 v25, v21, v18",
                "v_cvt_pk_bf16_f32 v%d, v22, v23" % (vM + u),
                "v_cvt_pk_bf16_f32 v%d, v24, v25" % (vM + 2 + u),
                "v_cvt_pk_bf16_f32 v%d, v24, v25" % (vM + 4 + u),
                "v_cvt_pk_bf16_f32 v%d, -v22, -v23" % (vM + 6 + u)]
    sync(128, pre)
    stamp(a, cfg, 5)
    a("s_lshl_b32 s5, s%d, 3" % s_q)
    a("s_lshr_b32 s6, s%d, 1" % s_p0)
    a("s_add_u32 s5, s5, s6")
    a("s_lshl_b32 s5, s5, 15")
    dma32k(sV, 5)
    a("v_lshlrev_b32 v%d, 5, v%d" % (vSt, vN))
    a("v_lshl_add_u32 v%d, v%d, 3, v%d" % (vSt, vG, vSt))
    a("s_lshl_b32 s3, s%d, 11" % s_n0)
    a("v_add_u32 v%d, s3, v%d" % (vSt, vSt))
    a("s_mov_b64 s[36:37], 0xffff")
    a("s_waitcnt vmcnt(0)")
    first_stage(32, 0, lambda i: V4(vM), lambda i: V4(vM + 4), lambda i, j: epos((E0, E1)[i & 1], i >> 1, j), 64)
    for x in exchange(E0) + exchange(E1): a(x)
    Dq = [64, 88]
    Pq = [56, 16]; D5 = 112; Oq = 24; vTmp = 48 + 0
    vTmp = 4 if False else None
    tmp8 = 48
    def T1(r):
        D = Dq[r % 2]
        return [mfma(D + 16, V4(E0 + 4 * r), A4(aBs)), mfma(D + 20, V4(E0 + 4 * r), A4(aBs + 4)),
                mfma(D, V4(E0 + 4 * r), A4(aBb)), mfma(D + 4, V4(E0 + 4 * r), A4(aBb + 4)),
                mfma(D + 8, V4(E1 + 4 * r), A4(aBb)), mfma(D + 12, V4(E1 + 4 * r), A4(aBb + 4))]
    def T2(r):
        D = Dq[r % 2]; P = Pq[r % 2]
        l = ["v_cndmask_b32 v%d, v%d, v%d, s[36:37]" % (D, D, D + 16), "v_cndmask_b32 v%d, v%d, v%d, s[36:37]" % (D + 4, D + 4, D + 20)]
        for t in range(2):
            l += cmul(D + 8 * t, D + 8 * t + 4, vTw3 + 8 * t, vTw3 + 8 * t + 4, tmp8)
            l += [cvt(P + 4 * t + j, D + 8 * t + j, D + 8 * t + 4 + j) for j in range(4)]
        return l
    def T3(r):
        P = Pq[r % 2]
        return [mfma(D5 + 4 * bt, V4(P), A4(aBa3 + 8 * bt)) for bt in range(4)] + [mfma(D5 + 4 * bt, V4(P + 4), A4(aBa3 + 8 * bt + 4), D5 + 4 * bt) for bt in range(4)]
    def T4(r):
        e, i = r >> 3, r & 7
        l = ["s_mov_b32 s3, %d" % ((16 * e + 256 * i) * 2048)]
        for bt in range(4):
            l += [cvt(Oq + 2 * bt, D5 + 4 * bt, D5 + 4 * bt + 1), cvt(Oq + 2 * bt + 1, D5 + 4 * bt + 2, D5 + 4 * bt + 3),
                  "buffer_store_dwordx2 %s, v%d, s[%d:%d], s3 offen offset:%d" % (vr(Oq + 2 * bt, 2), vSt, sS, sS + 3, bt * 512)]
        return l
    for x in T1(0): a(x)
    for k in range(17):
        mf = (T3(k - 1) if k >= 1 else []) + (T1(k + 1) if k + 1 < 16 else [])
        va = (T2(k) if k < 16 else []) + (T4(k - 1) if k >= 1 else [])
        for x in (merge(mf, va) if k < 15 else mf + va): a(x)
    a("s_mov_b32 s36, s54")
    a("s_mov_b32 s37, s55")
    stamps_out(a, cfg, 6, 36, 2, vT0, 0)
    lines, added = hazard.pad(a.lines)
    print("spec: %d lines, %d nop states added" % (len(lines), added))
    a0.lines += lines
```

```python
import numpy as np, math
def bf16bits(x):
    u = np.array(x, dtype=np.float32).view(np.uint32).astype(np.uint64)
    r = ((u + 0x7FFF + ((u >> 16) & 1)) >> 16) & 0xFFFF
    return r.astype(np.uint32)
def cs(num, den):
    num = num % den
    c = math.cos(2 * math.pi * num / den); s = math.sin(2 * math.pi * num / den)
    if abs(c) < 1e-12: c = 0.0
    if abs(s) < 1e-12: s = 0.0
    return c, s
def quad_bf(fn):
    q = np.zeros((64, 4), dtype=np.uint32)
    for l in range(64):
        v = [fn(l & 15, l >> 4, k) for k in range(8)]
        b = bf16bits(v)
        for r in range(4):
            q[l, r] = b[2 * r] | (b[2 * r + 1] << 16)
    return q
def quad_f32(fn):
    q = np.zeros((64, 4), dtype=np.float32)
    for l in range(64):
        for j in range(4):
            q[l, j] = fn(l & 15, l >> 4, j)
    return q.view(np.uint32)
def build():
    Q = []
    for nt in range(4):
        t, im = nt >> 1, nt & 1
        for ks in range(2):
            def f(n, g, k, t=t, im=im, ks=ks):
                b = 32 * ks + 16 * (k >> 2) + 4 * g + (k & 3)
                k1 = 16 * t + n
                if im and k1 == 0: return 1.0 if b % 2 == 0 else -1.0
                c, s = cs(k1 * b, 64)
                return -s if im else c
            Q.append(quad_bf(f))
    def mk16(sig, out_im):
        def f(m, g, k):
            a = 4 * g + (k >> 1); h = k & 1
            c, s = cs(a * m, 16); s = -s
            if not out_im: return -s if h else c
            sg = -1.0 if (sig and m >= 8) else 1.0
            return sg * (c if h else s)
        return f
    Q.append(quad_bf(mk16(True, False))); Q.append(quad_bf(mk16(True, True)))
    def mkas(out_im):
        def f(m, g, k):
            a = 4 * g + (k >> 1); h = k & 1
            if m == 0:
                if h or out_im: return 0.0
                return 1.0 if a % 2 == 0 else -1.0
            if m < 8:
                if h: return 0.0
                c, s = cs(a * m, 16)
            else:
                if not h: return 0.0
                c, s = cs(a * (64 * (15 - m) + 32), 1024)
            return -s if out_im else c
        return f
    Q.append(quad_bf(mkas(False))); Q.append(quad_bf(mkas(True)))
    for t in range(2):
        Q.append(quad_f32(lambda n, g, j, t=t: cs((4 * g + j) * (16 * t + n), 1024)[0]))
        Q.append(quad_f32(lambda n, g, j, t=t: -cs((4 * g + j) * (16 * t + n), 1024)[1]))
    for q in range(16):
        for out_im in (False, True):
            def f(m, g, k, q=q, out_im=out_im):
                p = 4 * g + (k >> 1); h = k & 1
                c, s = cs(m * (16 * p + q), 256); s = -s
                if not out_im: return -s if h else c
                return c if h else s
            Q.append(quad_bf(f))
    Q.append(quad_bf(mk16(False, False))); Q.append(quad_bf(mk16(False, True)))
    def mkbb(out_im):
        def f(a, g, k):
            k2 = 4 * g + (k >> 1); h = k & 1
            c, s = cs(k2 * a, 16); sg = -1.0 if k2 >= 8 else 1.0
            if not out_im: return -sg * s if h else c
            return sg * c if h else s
        return f
    Q.append(quad_bf(mkbb(False))); Q.append(quad_bf(mkbb(True)))
    def mkbs(out_im):
        def f(a, g, k):
            k2 = 4 * g + (k >> 1); h = k & 1
            if not out_im:
                if k2 == 0: return 0.0 if h else (1.0 if a % 2 == 0 else -1.0)
                if k2 >= 8: return 0.0
                c, s = cs(k2 * a, 16)
            else:
                if k2 < 8: return 0.0
                c, s = cs((32 + 64 * (15 - k2)) * a, 1024)
            return -2 * s if h else 2 * c
        return f
    Q.append(quad_bf(mkbs(False))); Q.append(quad_bf(mkbs(True)))
    for bt in range(4):
        for t in range(2):
            def f(n, g, k, bt=bt, t=t):
                b = 16 * bt + n; k1 = 16 * t + 4 * g + (k >> 1); h = k & 1
                if k1 == 0: return (1.0 if b % 2 == 0 else -1.0) if h else 1.0
                c, s = cs(k1 * b, 64)
                return -2 * s if h else 2 * c
            Q.append(quad_bf(f))
    for t in range(2):
        Q.append(quad_f32(lambda a, g, j, t=t: cs(a * (16 * t + 4 * g + j), 1024)[0]))
        Q.append(quad_f32(lambda a, g, j, t=t: cs(a * (16 * t + 4 * g + j), 1024)[1]))
    return np.stack(Q)
def asm_text(label):
    T = build().reshape(-1)
    out = [".p2align 8", ".type %s,@object" % label, "%s:" % label]
    for i in range(0, len(T), 16):
        out.append(".long " + ",".join("0x%x" % v for v in T[i:i + 16]))
    out.append(".size %s, %d" % (label, len(T) * 4))
    return "\n".join(out), len(T) * 4
```

```python
import sys, json
from asmlib import *
import g1

HEADER = """; Kernarg layout (80 bytes, ptrs only, base s[0:1]):
"""

def build(cfg):
    a = Asm()
    launches = []
    descs = []
    a.raw('.amdgcn_target "amdgcn-amd-amdhsa--gfx950"')
    a.raw(".text")
    which = cfg.get("kernels", "ABC")
    if "A" in which:
        import ka
        kernel_begin(a, "ka_kernel")
        v, acc, lds = ka.gen_ka(a, cfg)
        launches.append(("ka_kernel", 256, 256, lds))
        descs.append(kernel_desc("ka_kernel", v, 102, acc))
    if "B" in which:
        NW = cfg.get("nw", 4)
        kernel_begin(a, "kb_kernel")
        a("s_cmp_ge_u32 s2, 256")
        a("s_cbranch_scc1 L_kb_exit")
        a("s_and_b32 s3, s2, 7")
        a("s_lshr_b32 s4, s2, 3")
        if cfg.get("allcu"):
            a("s_max_u32 s4, s4, 4")
        elif cfg.get("ncu"):
            a("s_cmp_lt_u32 s4, %d" % (32 - cfg["ncu"]))
            a("s_cbranch_scc1 L_kb_spec")
        else:
            a("s_cmp_lt_u32 s4, 4")
            a("s_cbranch_scc1 L_kb_spec")
        a("s_sub_u32 s4, s4, 4")
        v, acc = g1.gen_gemm1(a, cfg)
        a.label("L_kb_spec")
        if cfg.get("spec", True):
            import spec
            spec.gen_spec(a, cfg)
        a.label("L_kb_exit")
        a("s_endpgm")
        launches.append(("kb_kernel", 256, 64 * NW, cfg.get("ring", 4) * 32768))
        descs.append(kernel_desc("kb_kernel", v, 102, acc))
    if "C" in which:
        import g2
        kernel_begin(a, "kc_kernel")
        v, acc, lds, thr = g2.gen_gemm2(a, cfg)
        launches.append(("kc_kernel", 256, thr, lds))
        descs.append(kernel_desc("kc_kernel", v, 102, acc))
    for t in cfg.get("_tables", []):
        a.raw(t)
    out = HEADER
    for (k, g, b, lds) in launches:
        out += "; @launch kernel=%s grid=(%d,1,1) block=(%d,1,1) lds=%d\n" % (k, g, b, lds)
    out += a.text()
    out += '.section .rodata,"a"\n' + "".join(descs)
    return out

if __name__ == "__main__":
    outp = sys.argv[1]
    cfg = json.loads(sys.argv[2]) if len(sys.argv) > 2 else {}
    open(outp, "w").write(build(cfg))
```

```python
from asmlib import *
WS_XN = 0
WS_H  = 4 << 20
WS_X1 = 20 << 20
WS_V  = 24 << 20
WS_S  = 28 << 20
WS_DBG = 36 << 20
F = 3584

def stamp(a, cfg, idx, sbase=56):
    if cfg.get("stamps"):
        a("s_memtime s[%d:%d]" % (sbase + 2 * idx, sbase + 2 * idx + 1))
        if idx == 0:
            a("s_memrealtime s[100:101]")

def stamps_out(a, cfg, n, s_ws_lo, s_wg, vtmp, region, sbase=56):
    if not cfg.get("stamps"):
        return
    a("s_waitcnt lgkmcnt(0) vmcnt(0)")
    stamp(a, cfg, n)
    a("s_memrealtime s[98:99]")
    a("s_waitcnt lgkmcnt(0)")
    n += 1
    assert n <= 14
    srd(a, 84, s_ws_lo, s_ws_lo + 1, 1 << 20, WS_DBG + region)
    a("v_lshrrev_b32 v%d, 6, v0" % vtmp)
    a("v_lshlrev_b32 v%d, 6, v%d" % (vtmp, vtmp))
    a("s_lshl_b32 s88, s%d, 9" % s_wg)
    a("v_add_u32 v%d, s88, v%d" % (vtmp, vtmp))
    for i, r in [(i, sbase + 2 * i) for i in range(n)] + [(14, 100), (15, 98)]:
        a("v_mov_b32 v%d, s%d" % (vtmp + 1, r))
        a("buffer_store_dword v%d, v%d, s[84:87], 0 offen offset:%d" % (vtmp + 1, vtmp, 4 * i))
    a("s_waitcnt vmcnt(0)")

def gen_gemm1(a, cfg):
    NW = cfg.get("nw", 4)
    R = cfg.get("ring", 4)
    WN = NW // 2
    FT = 8 // WN
    XT = 8
    NCH = 8 // NW
    ND = 4 * NCH
    NS = 32
    sXN, sWG, sWU, sH = 8, 12, 16, 20
    s_mb, s_ft, s_w = 24, 25, 26
    s_sx, s_sw, s_m0, s_cnt = 27, 28, 29, 30
    a("s_load_dwordx4 s[32:35], s[0:1], 32")
    a("s_load_dwordx2 s[36:37], s[0:1], 72   ; ws")
    stamp(a, cfg, 0)
    a("s_and_b32 s5, s3, 1")
    a("s_lshl_b32 s5, s5, 2")
    a("s_and_b32 s6, s4, 3")
    a("s_add_u32 s%d, s5, s6" % s_mb)
    a("s_lshr_b32 s5, s3, 1")
    a("s_mul_i32 s5, s5, 7")
    a("s_lshr_b32 s6, s4, 2")
    a("s_add_u32 s%d, s5, s6" % s_ft)
    vL, vT0, vT1, vT2 = 1, 2, 3, 4
    vDX = 5
    vDW = 7
    NSET = (R + 1) // 2
    vRX = 9
    vRW = 12
    vG = 24; vR = 25
    fragbase = 32
    fX = lambda st, xi: fragbase + st * (4 * XT + 8 * FT) + 4 * xi
    fW = lambda st, u, fi: fragbase + st * (4 * XT + 8 * FT) + 4 * XT + 4 * (u * FT + fi)
    nfrag = 2 * (4 * XT + 8 * FT)
    acc = lambda u, fi, xi: 4 * ((u * FT + fi) * XT + xi)
    nacc = 2 * FT * XT * 4
    ACCV = (NW == 8)
    AC = (lambda b, n=1: vr(128 + b, n)) if ACCV else ar
    a("v_lshrrev_b32 v%d, 6, v0" % vT0)
    a("v_and_b32 v%d, 63, v0" % vL)
    a("v_readfirstlane_b32 s%d, v%d" % (s_w, vT0))
    a("v_lshrrev_b32 v%d, 4, v%d" % (vG, vL))
    a("v_and_b32 v%d, 15, v%d" % (vT0, vL))
    a("v_lshlrev_b32 v%d, 6, v%d" % (vT1, vT0))
    a("v_lshl_add_u32 v%d, v%d, 4, v%d" % (vT1, vG, vT1))
    a("s_mul_i32 s5, s%d, %d" % (s_w, NCH * 2048))
    a("v_add_u32 v%d, s5, v%d" % (vDX, vT1))
    if NCH == 2:
        a("v_add_u32 v%d, 2048, v%d" % (vDX + 1, vDX))
    a("s_mul_i32 s5, s%d, %d" % (s_w, NCH))
    a("s_lshr_b32 s6, s5, 1")
    a("s_and_b32 s6, s6, 1")
    a("s_lshl_b32 s6, s6, 2")
    a("v_or_b32 v%d, s6, v%d" % (vT1, vG))
    a("v_lshlrev_b32 v%d, 1, v%d" % (vT1, vT1))
    a("v_xor_b32 v%d, v%d, v%d" % (vT1, vT1, vT0))
    a("v_lshlrev_b32 v%d, 4, v%d" % (vT1, vT1))
    a("s_lshl_b32 s6, s5, 2")
    a("v_add_u32 v%d, s6, v%d" % (vT2, vG))
    a("v_mul_u32_u24 v%d, %d, v%d" % (vT2, 2 * F, vT2))
    a("s_lshl_b32 s6, s%d, 8" % s_ft)
    a("v_add3_u32 v%d, v%d, v%d, s6" % (vDW, vT1, vT2))
    if NCH == 2:
        a("v_add_u32 v%d, %d, v%d" % (vDW + 1, 4 * 2 * F, vDW))
    a("s_lshl_b32 s%d, s5, 12" % s_m0)
    a("s_lshl_b32 s%d, s%d, 19" % (s_sx, s_mb))
    a("s_mov_b32 s%d, 0" % s_sw)
    a("s_waitcnt lgkmcnt(0)")
    srd(a, sXN, 36, 37, 4 << 20, WS_XN)
    srd(a, sWG, 32, 33, 1024 * F * 2 + 2048, -2048)
    srd(a, sWU, 34, 35, 1024 * F * 2 + 3072, -3072)

    def dma(slot):
        gs = []
        for c in range(NCH):
            m0 = ["s_add_u32 m0, s%d, %d" % (s_m0, slot * 32768 + c * 4096)]
            gs.append(m0 + ["s_nop 0", "buffer_load_dwordx4 v%d, s[%d:%d], s%d offen offset:2048 lds" % (vDW + c, sWG, sWG + 3, s_sw)])
            gs.append(["buffer_load_dwordx4 v%d, s[%d:%d], s%d offen offset:3072 lds" % (vDW + c, sWU, sWU + 3, s_sw)])
            gs.append(["buffer_load_dwordx4 v%d, s[%d:%d], s%d offen lds" % (vDX + c, sXN, sXN + 3, s_sx)])
            gs.append(["buffer_load_dwordx4 v%d, s[%d:%d], s%d offen offset:1024 lds" % (vDX + c, sXN, sXN + 3, s_sx)])
        gs[-1] = gs[-1] + ["s_add_u32 s%d, s%d, 16384" % (s_sx, s_sx), "s_add_u32 s%d, s%d, %d" % (s_sw, s_sw, 32 * 2 * F)]
        return gs
    for s in range(R):
        for g in dma(s):
            for i in g:
                a(i)
    if cfg.get("touch", True):
        a("s_load_dwordx4 s[48:51], s[0:1], 8")
        a("s_load_dwordx2 s[52:53], s[0:1], 48")
        a("s_sub_u32 s5, s2, 32")
        a("s_mul_i32 s5, s5, %d" % (64 * NW))
        a("v_add_u32 v28, s5, v0")
        a("v_lshlrev_b32 v29, %d, v28" % cfg.get("tsh", 6))
        a("s_waitcnt lgkmcnt(0)")
        srd(a, 84, 48, 49, 2048 * 513 * 2)
        srd(a, 88, 50, 51, 2048 * 513 * 2)
        srd(a, 92, 52, 53, F * 1024 * 2)
        a("v_subrev_u32 v28, 0x%x, v29" % (3 << 20))
        a("s_add_u32 s54, s3, s4")
        a("s_mul_i32 s55, s54, 43")
        a("s_lshr_b32 s55, s55, 8")
        a("s_mul_i32 s55, s55, 6")
        a("s_sub_u32 s54, s54, s55")
        a("s_add_u32 s54, s54, 1")
    NT = 0
    if cfg.get("tlb"):
        sh = cfg["tlb"]
        a("v_lshlrev_b32 v31, %d, v0" % sh)
        a("buffer_load_dword v30, v31, s[%d:%d], 0 offen offset:4092" % (sWG, sWG + 3))
        a("buffer_load_dword v30, v31, s[%d:%d], 0 offen offset:4092" % (sWU, sWU + 3))
        NT = 2
    srd(a, sH, 36, 37, 2048 * F * 2, WS_H)
    a("s_lshr_b32 s5, s%d, %d" % (s_w, 1 if WN == 2 else 2))
    a("s_and_b32 s6, s%d, %d" % (s_w, WN - 1))
    a("s_lshl_b32 s7, s5, 14")
    a("v_lshl_add_u32 v%d, v%d, 4, s7" % (vRX, vL))
    for k in range(1, NSET):
        a("v_add_u32 v%d, 0x%x, v%d" % (vRX + k, 65536 * k, vRX))
    a("v_bfe_u32 v%d, v%d, 2, 2" % (vR, vL))
    a("v_and_b32 v%d, 1, v%d" % (vT0, vG))
    a("v_lshl_or_b32 v%d, v%d, 2, v%d" % (vT0, vT0, vR))
    a("v_lshlrev_b32 v%d, 13, v%d" % (vT1, vG))
    a("v_lshl_add_u32 v%d, v%d, 8, v%d" % (vT1, vR, vT1))
    a("v_and_b32 v%d, 3, v%d" % (vT2, vL))
    a("v_lshl_add_u32 v%d, v%d, 3, v%d" % (vT1, vT2, vT1))
    a("s_mul_i32 s7, s6, %d" % FT)
    for fi in range(FT):
        a("s_add_u32 s31, s7, %d" % fi)
        a("v_xor_b32 v%d, s31, v%d" % (vT2, vT0))
        a("v_lshl_add_u32 v%d, v%d, 5, v%d" % (vRW + fi, vT2, vT1))
        for k in range(1, NSET):
            a("v_add_u32 v%d, 0x%x, v%d" % (vRW + k * FT + fi, 65536 * k, vRW + fi))
    for i in range(nacc):
        a("v_mov_b32 v%d, 0" % (128 + i) if ACCV else "v_accvgpr_write_b32 a%d, 0" % i)

    def reads(slot, st):
        k, off = slot // 2, (slot % 2) * 32768
        rx = ["ds_read_b128 %s, v%d offset:%d" % (vr(fX(st, xi), 4), vRX + k, off + (xi >> 1) * 4096 + (xi & 1) * 1024) for xi in range(XT)]
        rw = []
        for fi in range(FT):
            for u in range(2):
                for jj in range(2):
                    rw.append("ds_read_b64_tr_b16 %s, v%d offset:%d" % (vr(fW(st, u, fi) + 2 * jj, 2), vRW + k * FT + fi, off + jj * 4096 + 2048 + u * 1024))
        return rw[:2] + rx + rw[2:]
    def mfmas(st):
        l = []
        order = cfg.get("order", "wx")
        if order == "xw":
            for xi in range(XT):
                for fi in range(FT):
                    for u in range(2):
                        c = AC(acc(u, fi, xi), 4)
                        l.append("v_mfma_f32_16x16x32_bf16 %s, %s, %s, %s" % (c, vr(fW(st, u, fi), 4), vr(fX(st, xi), 4), c))
            return l
        if order == "diag":
            nw_ = 2 * FT
            for d in range(XT):
                for w_ in range(nw_):
                    xi = (w_ + d) % XT
                    fi, u = w_ // 2, w_ % 2
                    c = AC(acc(u, fi, xi), 4)
                    l.append("v_mfma_f32_16x16x32_bf16 %s, %s, %s, %s" % (c, vr(fW(st, u, fi), 4), vr(fX(st, xi), 4), c))
            return l
        for fi in range(FT):
            for u in range(2):
                xs = list(range(XT))
                if order == "snake" and u == 1: xs = xs[::-1]
                for xi in xs:
                    c = AC(acc(u, fi, xi), 4)
                    l.append("v_mfma_f32_16x16x32_bf16 %s, %s, %s, %s" % (c, vr(fW(st, u, fi), 4), vr(fX(st, xi), 4), c))
        return l
    a("s_waitcnt vmcnt(%d)" % ((R - 1) * ND + NT))
    a("s_barrier")
    for i in reads(0, 0):
        a(i)
    if cfg.get("noread"):
        a("s_waitcnt vmcnt(0)")
        a("s_barrier")
        for i in reads(1, 1):
            a(i)
    stamp(a, cfg, 1)
    NM = 2 * FT * XT
    def interval(s, do_dma, do_read, vm):
        a("s_waitcnt lgkmcnt(0) vmcnt(%d)" % vm if vm is not None else "s_waitcnt lgkmcnt(0)")
        if do_read:
            a("s_barrier")
        fill = {}
        if cfg.get("noread"): do_read = False
        if cfg.get("nodma"): do_dma = False
        if do_read:
            rd = reads((s + 1) % R, (s + 1) % 2)
            r0 = cfg.get("rd_start", 0); rstep = cfg.get("rd_step", 2 if NW == 4 else 1)
            for i, x in enumerate(rd):
                fill.setdefault(min(NM - 1, r0 + i * rstep), []).append(x)
        if do_dma:
            d0 = cfg.get("dma_start", 1); dstep = cfg.get("dma_step", 8)
            for i, g in enumerate(dma(s % R)):
                fill.setdefault(min(NM - 1, d0 + i * dstep), []).extend(g)
        for i in interleave(mfmas(s % 2), fill):
            a(i)
    U = R if R % 2 == 0 else 2 * R
    nloop = (NS - R) // U
    a("s_mov_b32 s%d, %d" % (s_cnt, nloop))
    lab = a.newlabel("L_g1loop")
    a.raw(".p2align 6")
    a.label(lab)
    for s in range(U):
        interval(s, True, True, (R - 2) * ND)
        if cfg.get("touch", True) and s == 0:
            a("s_cmp_lg_u32 s%d, s54" % s_cnt)
            a("s_cbranch_scc1 L_g1_nt0")
            a("buffer_load_dword v30, v29, s[92:95], 0 offen")
            a.label("L_g1_nt0")
            a("s_cmp_lg_u32 s%d, %d" % (s_cnt, nloop))
            a("s_cbranch_scc1 L_g1_nt1")
            a("buffer_load_dword v30, v29, s[84:87], 0 offen")
            a("buffer_load_dword v30, v28, s[88:91], 0 offen")
            a.label("L_g1_nt1")
    if cfg.get("iterstamps"):
        a("s_memtime s[46:47]")
        a("s_memrealtime s[48:49]")
        a("s_waitcnt lgkmcnt(0)")
        a("s_mov_b32 m0, s%d" % s_cnt)
        a("v_writelane_b32 v30, s46, m0")
        a("v_writelane_b32 v31, s48, m0")
    a("s_sub_u32 s%d, s%d, 1" % (s_cnt, s_cnt))
    a("s_cmp_lg_u32 s%d, 0" % s_cnt)
    a("s_cbranch_scc1 %s" % lab)
    for s in range(nloop * U, NS):
        dd = s + R < NS
        last_issued = min(s + R - 1, NS - 1)
        interval(s, dd, s + 1 < NS, max(0, last_issued - (s + 1)) * ND if s + 1 < NS else None)
    stamp(a, cfg, 2)
    a("s_lshl_b32 s7, s%d, 1" % s_mb)
    a("s_add_u32 s7, s7, s5")
    a("s_mul_i32 s7, s7, 112")
    a("s_lshl_b32 s31, s%d, 2" % s_ft)
    a("s_add_u32 s7, s7, s31")
    a("s_mul_i32 s31, s6, %d" % (FT // 2))
    a("s_add_u32 s7, s7, s31")
    a("s_lshl_b32 s7, s7, 13")
    a("v_lshl_add_u32 v%d, v%d, 4, s7" % (vT0, vL))
    a("v_add_u32 v%d, 4096, v%d" % (vT1, vT0))
    import math
    c1 = -2.0 * math.sqrt(2.0 / math.pi) * math.log2(math.e)
    c2 = c1 * 0.044715
    import struct
    f2u = lambda x: struct.unpack("<I", struct.pack("<f", x))[0]
    a("s_mov_b32 s40, 0x%x" % f2u(c1)); a("s_mov_b32 s41, s40")
    a("s_mov_b32 s42, 0x%x" % f2u(c2)); a("s_mov_b32 s43, s42")
    a("s_mov_b32 s44, 1.0"); a("s_mov_b32 s45, 1.0")
    a("v_mov_b32 v26, s40"); a("v_mov_b32 v27, s40")
    a("s_nop 7")
    tb = fragbase
    n = 0
    for fp in range(FT // 2):
        for xi in range(XT):
            b = tb + (n % (4 if NW == 4 else 3)) * 32
            n += 1
            G, Uu, T, O = b, b + 8, b + 16, b + 24
            if ACCV:
                Gr = lambda p: 128 + acc(0, 2 * fp + (p >> 1), xi) + 2 * (p & 1)
                Ur = lambda p: 128 + acc(1, 2 * fp + (p >> 1), xi) + 2 * (p & 1)
            else:
                Gr = lambda p: G + 2 * p
                Ur = lambda p: Uu + 2 * p
                for h in range(2):
                    for j in range(4):
                        a("v_accvgpr_read_b32 v%d, a%d" % (G + 4 * h + j, acc(0, 2 * fp + h, xi) + j))
                for h in range(2):
                    for j in range(4):
                        a("v_accvgpr_read_b32 v%d, a%d" % (Uu + 4 * h + j, acc(1, 2 * fp + h, xi) + j))
            for p in range(4):
                a("v_pk_mul_f32 %s, %s, %s" % (vr(T + 2 * p, 2), vr(Gr(p), 2), vr(Gr(p), 2)))
            for p in range(4):
                a("v_pk_fma_f32 %s, %s, s[42:43], v[26:27]" % (vr(T + 2 * p, 2), vr(T + 2 * p, 2)))
            for p in range(4):
                a("v_pk_mul_f32 %s, %s, %s" % (vr(T + 2 * p, 2), vr(T + 2 * p, 2), vr(Gr(p), 2)))
            for p in range(8):
                a("v_exp_f32 v%d, v%d" % (T + p, T + p))
            for p in range(4):
                a("v_pk_mul_f32 %s, %s, %s" % (vr(Gr(p), 2), vr(Gr(p), 2), vr(Ur(p), 2)))
            for p in range(4):
                a("v_pk_add_f32 %s, %s, s[44:45]" % (vr(T + 2 * p, 2), vr(T + 2 * p, 2)))
            for p in range(8):
                a("v_rcp_f32 v%d, v%d" % (T + p, T + p))
            a("s_nop 0")
            for p in range(4):
                a("v_pk_mul_f32 %s, %s, %s" % (vr(Gr(p), 2), vr(Gr(p), 2), vr(T + 2 * p, 2)))
            for p in range(4):
                a("v_cvt_pk_bf16_f32 v%d, v%d, v%d" % (O + p, Gr(p), Gr(p) + 1))
            off = xi * 1024
            vo = vT0 if off < 4096 else vT1
            a("s_mov_b32 s31, %d" % (fp * 8192))
            a("buffer_store_dwordx4 %s, v%d, s[%d:%d], s31 offen offset:%d %s" % (vr(O, 4), vo, sH, sH + 3, off % 4096, cfg.get("hstore", "")))
    stamp(a, cfg, 3)
    stamps_out(a, cfg, 4, 36, 2, vT0, 0)
    if cfg.get("iterstamps"):
        srd(a, 84, 36, 37, 4 << 20, WS_DBG + (1 << 20))
        a("s_lshl_b32 s88, s2, 12")
        a("v_lshl_add_u32 v%d, v0, 3, s88" % vT0)
        a("buffer_store_dwordx2 v[30:31], v%d, s[84:87], 0 offen" % vT0)
        a("s_waitcnt vmcnt(0)")
    a("s_endpgm")
    if ACCV:
        return 256, 256
    return 512, 256
```

```python
from asmlib import *
from g1 import WS_H, WS_DBG, F, stamp, stamps_out
import hazard, math, struct
f2u = lambda x: struct.unpack("<I", struct.pack("<f", x))[0]
WS_ST = 33 << 20
WS_CS = 34 << 20
DBG_SP1, DBG_SP2, DBG_S, DBG_ST, DBG_H, DBG_CS = 0, 4, 8, 12, 16, 128

def gen_gemm1f(a0, cfg, cont=None):
    a = Asm()
    R, U, NS, XT, FT, ND = 4, 4, 32, 8, 2, 8
    sX, sWG, sWU, sH, sDbg, sTq = 8, 12, 16, 20, 24, 64
    if cfg.get("stamps"): sTq = 84
    s_mb, s_ft, s_w, s_wn = 28, 29, 30, 31
    s_sx, s_sw, s_dx, s_dw, s_m0, s_cnt, s_cs = 38, 39, 40, 41, 42, 43, 44
    a("s_load_dwordx2 s[32:33], s[0:1], 0     ; x")
    a("s_load_dwordx4 s[48:51], s[0:1], 32")
    a("s_load_dwordx4 s[52:55], s[0:1], 64")
    stamp(a, cfg, 0)
    a("s_and_b32 s5, s3, 1")
    a("s_lshl_b32 s6, s5, 2")
    a("s_and_b32 s7, s4, 3")
    a("s_add_u32 s%d, s6, s7" % s_mb)
    a("s_lshr_b32 s6, s3, 1")
    a("s_mul_i32 s6, s6, 7")
    a("s_lshr_b32 s7, s4, 2")
    a("s_add_u32 s%d, s6, s7" % s_ft)
    a("s_lshl_b32 s6, s%d, 2" % s_mb)
    a("s_lshr_b32 s%d, 0x72343456, s6" % s_cs)
    a("s_and_b32 s%d, s%d, 15" % (s_cs, s_cs))
    a("s_mul_i32 s%d, s5, 8" % s_dx)
    a("s_mul_i32 s%d, s5, -20" % s_dw)
    a("s_mov_b32 s%d, 0" % s_sx)
    a("s_mov_b32 s%d, 0" % s_sw)
    vL, vG, vT0, vT1, vT2 = 1, 2, 3, 4, 5
    vRX, vRW = 6, 8
    vDX, vDW = 12, 16
    vCS, vOne, vTch, vDum = 12, 28, 3, 0
    fragbase = 32
    fX = lambda st, xi: fragbase + st * 48 + 4 * xi
    fW = lambda st, u, fi: fragbase + st * 48 + 32 + 4 * (u * FT + fi)
    acc = lambda u, fi, xi: 128 + 4 * ((u * FT + fi) * XT + xi)
    a("v_lshrrev_b32 v%d, 6, v0" % vT0)
    a("v_and_b32 v%d, 63, v0" % vL)
    a("v_readfirstlane_b32 s%d, v%d" % (s_w, vT0))
    a("v_lshrrev_b32 v%d, 4, v%d" % (vG, vL))
    a("s_and_b32 s%d, s%d, 3" % (s_wn, s_w))
    def dma(slot):
        gs = []
        for c in range(2):
            gs.append(["s_add_u32 m0, s%d, %d" % (s_m0, slot * 32768 + c * 4096), "s_nop 0",
                       "buffer_load_dwordx4 v%d, s[%d:%d], s%d offen offset:2048 %s lds" % (vDW + c, sWG, sWG + 3, s_sw, cfg.get("wfl", ""))])
            gs.append(["buffer_load_dwordx4 v%d, s[%d:%d], s%d offen offset:3072 %s lds" % (vDW + c, sWU, sWU + 3, s_sw, cfg.get("wfl", ""))])
            gs.append(["buffer_load_dwordx4 v%d, s[%d:%d], s%d offen lds" % (vDX + 2 * c, sX, sX + 3, s_sx)])
            gs.append(["buffer_load_dwordx4 v%d, s[%d:%d], s%d offen offset:1024 lds" % (vDX + 2 * c + 1, sX, sX + 3, s_sx)])
        gs[-1] = gs[-1] + ["s_add_u32 s%d, s%d, 64" % (s_sx, s_sx), "s_add_u32 s%d, s%d, %d" % (s_sw, s_sw, 64 * F)]
        return gs
    def common_setup():
        a("s_lshr_b32 s5, s%d, 2" % s_w)
        a("v_and_b32 v%d, 15, v%d" % (vT0, vL))
        a("v_lshrrev_b32 v%d, 2, v%d" % (vT1, vT0))
        a("v_sub_u32 v%d, 0, v%d" % (vT1, vT1))
        a("v_xor_b32 v%d, v%d, v%d" % (vT1, vT1, vG))
        a("v_and_b32 v%d, 3, v%d" % (vT1, vT1))
        a("v_lshlrev_b32 v%d, 4, v%d" % (vT1, vT1))
        a("v_lshl_add_u32 v%d, v%d, 6, v%d" % (vT1, vT0, vT1))
        a("s_lshl_b32 s7, s5, 14")
        a("v_add_u32 v%d, s7, v%d" % (vRX, vT1))
        a("v_add_u32 v%d, 0x10000, v%d" % (vRX + 1, vRX))
        a("v_bfe_u32 v%d, v%d, 2, 2" % (vT2, vL))
        a("v_and_b32 v%d, 1, v%d" % (vT0, vG))
        a("v_lshl_or_b32 v%d, v%d, 2, v%d" % (vT0, vT0, vT2))
        a("v_lshlrev_b32 v%d, 13, v%d" % (vT1, vG))
        a("v_lshl_add_u32 v%d, v%d, 8, v%d" % (vT1, vT2, vT1))
        a("v_and_b32 v%d, 3, v%d" % (vT2, vL))
        a("v_lshl_add_u32 v%d, v%d, 3, v%d" % (vT1, vT2, vT1))
        a("s_lshl_b32 s7, s%d, 1" % s_wn)
        for fi in range(FT):
            a("s_add_u32 s6, s7, %d" % fi)
            a("v_xor_b32 v%d, s6, v%d" % (vT2, vT0))
            a("v_lshl_add_u32 v%d, v%d, 5, v%d" % (vRW + fi, vT2, vT1))
            a("v_add_u32 v%d, 0x10000, v%d" % (vRW + FT + fi, vRW + fi))
        srd(a, sH, 54, 55, 2048 * F * 2, WS_H)
        srd(a, sDbg, 52, 53, 256)
        for i in range(128):
            a("v_mov_b32 v%d, 0" % (128 + i))
    def reads(slot, st):
        k, off = slot // 2, (slot % 2) * 32768
        rx = ["ds_read_b128 %s, v%d offset:%d" % (vr(fX(st, xi), 4), vRX + k, off + (xi >> 1) * 4096 + (xi & 1) * 1024) for xi in range(XT)]
        rw = []
        for fi in range(FT):
            for u in range(2):
                for jj in range(2):
                    rw.append("ds_read_b64_tr_b16 %s, v%d offset:%d" % (vr(fW(st, u, fi) + 2 * jj, 2), vRW + k * FT + fi, off + jj * 4096 + 2048 + u * 1024))
        return rw[:2] + rx + rw[2:]
    def mfmas(st):
        l = []
        for fi in range(FT):
            for u in range(2):
                for xi in range(XT):
                    c = vr(acc(u, fi, xi), 4)
                    l.append("v_mfma_f32_16x16x32_bf16 %s, %s, %s, %s" % (c, vr(fW(st, u, fi), 4), vr(fX(st, xi), 4), c))
        return l
    NM = 32
    def interval(path, s, do_dma, do_read, vm, barrier=True, extra=None):
        if path == "d" and vm is not None:
            a("s_waitcnt lgkmcnt(0) vmcnt(%d)" % vm)
        else:
            a("s_waitcnt lgkmcnt(0)")
        if barrier:
            a("s_barrier")
        fill = {}
        if do_read:
            for i, x in enumerate(reads((s + 1) % R, (s + 1) % 2)):
                fill.setdefault(i, []).append(x)
        if do_dma and path == "d":
            slots = [s % R] if do_dma is True else do_dma
            gl = sum((dma(x) for x in slots), [])
            for i, g in enumerate(gl):
                fill.setdefault(min(NM - 1, 1 + i * (32 // len(gl))), []).extend(g)
        for pos, l in (extra or {}).items():
            fill.setdefault(pos, []).extend(l)
        for i in interleave(mfmas(s % 2), fill):
            a(i)
    csinit = ["v_mov_b32 v%d, 0x3f803f80" % (vOne + i) for i in range(4)]
    def cslocal(st, first=False):
        l = []
        for fi in range(FT):
            for u in range(2):
                c = vr(vCS + 4 * (u * FT + fi), 4)
                l.append("v_mfma_f32_16x16x32_bf16 %s, %s, %s, %s" % (c, vr(fW(st, u, fi), 4), vr(vOne, 4), "0" if first else c))
        return l
    a("s_cmp_ge_u32 s%d, 4" % s_w)
    a("s_cbranch_scc1 L_g1_touch")
    a("v_lshrrev_b32 v%d, 2, v%d" % (vT0, vL))
    a("v_sub_u32 v%d, 0, v%d" % (vT1, vG))
    a("v_xor_b32 v%d, v%d, v%d" % (vT1, vT1, vL))
    a("v_and_b32 v%d, 3, v%d" % (vT1, vT1))
    a("v_lshlrev_b32 v%d, 4, v%d" % (vT1, vT1))
    a("v_lshl_add_u32 v%d, v%d, 11, v%d" % (vT1, vT0, vT1))
    a("s_lshl_b32 s5, s%d, 19" % s_mb)
    a("s_lshl_b32 s6, s%d, 17" % s_w)
    a("s_add_u32 s5, s5, s6")
    a("v_add_u32 v%d, s5, v%d" % (vDX, vT1))
    for i in range(1, 4):
        a("v_add_u32 v%d, %d, v%d" % (vDX + i, i * 32768 - (i & 1) * 1024, vDX))
    a("v_and_b32 v%d, 15, v%d" % (vT0, vL))
    a("s_and_b32 s6, s%d, 1" % s_w)
    a("s_lshl_b32 s6, s6, 2")
    a("v_or_b32 v%d, s6, v%d" % (vT1, vG))
    a("v_lshlrev_b32 v%d, 1, v%d" % (vT1, vT1))
    a("v_xor_b32 v%d, v%d, v%d" % (vT1, vT1, vT0))
    a("v_lshlrev_b32 v%d, 4, v%d" % (vT1, vT1))
    a("s_lshl_b32 s6, s%d, 3" % s_w)
    a("v_add_u32 v%d, s6, v%d" % (vT2, vG))
    a("v_mul_u32_u24 v%d, %d, v%d" % (vT2, 2 * F, vT2))
    a("s_lshl_b32 s6, s%d, 8" % s_ft)
    a("v_add3_u32 v%d, v%d, v%d, s6" % (vDW, vT1, vT2))
    a("v_add_u32 v%d, %d, v%d" % (vDW + 1, 4 * 2 * F, vDW))
    a("s_lshl_b32 s%d, s%d, 13" % (s_m0, s_w))
    a("s_waitcnt lgkmcnt(0)")
    srd(a, sX, 32, 33, 4 << 20)
    srd(a, sWG, 48, 49, 1024 * F * 2 + 2048, -2048)
    srd(a, sWU, 50, 51, 1024 * F * 2 + 3072, -3072)
    for s in range(2):
        for g in dma(s):
            for i in g: a(i)
    common_setup()
    a("s_waitcnt vmcnt(%d)" % ND)
    a("s_barrier")
    for i in reads(0, 0): a(i)
    stamp(a, cfg, 1)
    interval("d", 0, [2, 3], True, 0)
    stamp(a, cfg, 2)
    interval("d", 1, [0, 1], True, ND)
    stamp(a, cfg, 3)
    interval("d", 2, True, True, 2 * ND)
    stamp(a, cfg, 4)
    interval("d", 3, True, True, 2 * ND)
    stamp(a, cfg, 5)
    a("s_mov_b32 s%d, 6" % s_cnt)
    a.raw(".p2align 6")
    a.label("L_g1_dloop")
    for s in range(U):
        interval("d", s, True, True, (R - 2) * ND)
    if cfg.get("iterstamps"):
        a("s_memtime s[46:47]")
        a("s_memrealtime s[34:35]")
        a("s_waitcnt lgkmcnt(0)")
        a("s_mov_b32 m0, s%d" % s_cnt)
        a("v_writelane_b32 v22, s46, m0")
        a("v_writelane_b32 v23, s34, m0")
    a("s_sub_u32 s%d, s%d, 1" % (s_cnt, s_cnt))
    a("s_cmp_eq_u32 s%d, 5" % s_cnt)
    a("s_cselect_b32 s5, s%d, 0" % s_dx)
    a("s_cmp_eq_u32 s%d, 2" % s_cnt)
    a("s_cselect_b32 s5, s%d, s5" % s_dw)
    a("s_mul_i32 s6, s5, 64")
    a("s_mul_i32 s7, s5, %d" % (64 * F))
    a("s_add_u32 s%d, s%d, s6" % (s_sx, s_sx))
    a("s_add_u32 s%d, s%d, s7" % (s_sw, s_sw))
    a("s_cmp_lg_u32 s%d, 0" % s_cnt)
    a("s_cbranch_scc1 L_g1_dloop")
    if cfg.get("iterstamps"):
        srd(a, 84, 54, 55, 4 << 20, WS_DBG + (1 << 20))
        a("s_lshl_b32 s88, s2, 12")
        a("v_lshl_add_u32 v3, v0, 3, s88")
        a("buffer_store_dwordx2 v[22:23], v3, s[84:87], 0 offen")
    interval("d", 28, False, True, 2 * ND)
    a("s_waitcnt vmcnt(0)")
    if cfg.get("prio", False):
        a("s_setprio 1")
    a("s_branch L_g1_tail")
    a.label("L_g1_touch")
    a("s_load_dwordx4 s[12:15], s[0:1], 8     ; w_r, w_i")
    a("s_load_dwordx2 s[16:17], s[0:1], 48    ; w_down")
    a("s_sub_u32 s45, s2, 32")
    a("s_cmp_ge_u32 s45, 112")
    a("s_cselect_b32 s7, 112, 0")
    a("s_sub_u32 s7, s45, s7")
    a("s_lshl_b32 s7, s7, 13")
    a("s_lshl_b32 s46, s45, 13")
    a("v_lshlrev_b32 v%d, 7, v%d" % (vTch, vL))
    a("s_waitcnt lgkmcnt(0)")
    a("s_cmp_ge_u32 s45, 112")
    a("s_cselect_b32 s12, s14, s12")
    a("s_cselect_b32 s13, s15, s13")
    a("s_cselect_b32 s18, s50, s48")
    a("s_cselect_b32 s19, s51, s49")
    SL = 64 * F
    q = sTq
    s_to, s_ts, s_tm, s_tp = sTq + 4, sTq + 5, sTq + 6, sTq + 7
    if cfg.get("touch", True):
        a("s_mul_i32 s35, s%d, %d" % (s_wn, 4 * SL))
        a("s_add_u32 s35, s35, %d" % SL)
        a("s_add_u32 s35, s35, s7")
        a("s_lshr_b32 s36, s45, 5")
        a("s_sub_u32 s37, s%d, 2" % s_wn)
        a("s_mul_i32 s37, s37, 7")
        a("s_add_u32 s36, s36, s37")
        a("s_add_u32 s36, s36, 1")
        a("s_lshl_b32 s36, s36, 7")
        a("s_and_b32 s37, s45, 31")
        a("s_lshl_b32 s37, s37, 17")
        a("s_add_u32 s36, s36, s37")
        a("s_cmp_ge_u32 s%d, 2" % s_wn)
        a("s_cselect_b32 s35, s36, s35")
        a("s_cselect_b32 s%d, s32, s18" % q); a("s_cselect_b32 s%d, s33, s19" % (q + 1))
        a("s_mov_b32 s47, %d" % (1024 * F * 2))
        a("s_cselect_b32 s%d, %d, s47" % (q + 2, (4 << 20) if cfg.get("xtouch", True) else 0))
        a("s_cselect_b32 s36, 11, 7")
        a("s_mov_b32 s%d, 0x20000" % (q + 3))
        a("v_lshlrev_b32 v%d, s36, v%d" % (vT2, vL))
        a("s_bitcmp0_b32 %d, s%d" % (cfg.get("pmask", 3), s_wn))
        a("s_cbranch_scc1 L_g1_nop")
        a("buffer_load_dword v%d, v%d, s[%d:%d], s35 offen" % (vDum, vT2, q, q + 3))
        a.label("L_g1_nop")
        a("s_mov_b32 s%d, s%d" % (q + 8, q)); a("s_mov_b32 s%d, s%d" % (q + 9, q + 1)); a("s_mov_b32 s%d, s%d" % (q + 10, q + 2)); a("s_mov_b32 s%d, 0x20000" % (q + 11))
        a("s_mov_b32 s%d, s35" % (q + 12)); a("s_mov_b32 s%d, s36" % (q + 13))
        a("s_cmp_ge_u32 s4, 2")
        a("s_cbranch_scc1 L_g1_nocode")
        a("s_getpc_b64 s[%d:%d]" % (q, q + 1))
        a.label("L_g1_pc")
        a("s_mov_b32 s%d, %s-L_g1_pc" % (q + 2, cfg.get("code_end", "L_kb_spec")))
        a("s_lshl_b32 s35, s4, 2")
        a("s_add_u32 s35, s35, s%d" % s_wn)
        a("s_lshl_b32 s35, s35, 13")
        a("buffer_load_dword v%d, v%d, s[%d:%d], s35 offen" % (vDum, vTch, q, q + 3))
        a.label("L_g1_nocode")
    a("s_mov_b32 s%d, s18" % q); a("s_mov_b32 s%d, s19" % (q + 1)); a("s_mov_b32 s%d, %d" % (q + 2, 1024 * F * 2)); a("s_mov_b32 s%d, 0x20000" % (q + 3))
    a("s_add_u32 s%d, s7, %d" % (s_to, 9 * SL)); a("s_mov_b32 s%d, %d" % (s_ts, 4 * SL)); a("s_mov_b32 s%d, 0xfe" % s_tm)
    a("s_add_u32 s35, s7, %d" % (20 * SL))
    a("s_cmp_eq_u32 s%d, 1" % s_wn)
    a("s_cselect_b32 s%d, s35, s%d" % (s_to, s_to)); a("s_cselect_b32 s%d, 0x70, s%d" % (s_tm, s_tm))
    a("s_sub_u32 s35, s%d, 2" % s_wn)
    a("s_mul_i32 s35, s35, %d" % (112 * 8192))
    a("s_add_u32 s35, s35, s7")
    a("s_cmp_ge_u32 s%d, 2" % s_wn)
    a("s_cselect_b32 s%d, s12, s%d" % (q, q)); a("s_cselect_b32 s%d, s13, s%d" % (q + 1, q + 1)); a("s_cselect_b32 s%d, %d, s%d" % (q + 2, 2048 * 513 * 2, q + 2))
    a("s_cselect_b32 s%d, s35, s%d" % (s_to, s_to)); a("s_cselect_b32 s%d, %d, s%d" % (s_ts, 224 * 8192, s_ts)); a("s_cselect_b32 s%d, %d, s%d" % (s_tm, cfg.get("wrmask", 0xc0), s_tm))
    a("s_add_u32 s%d, s4, s%d" % (s_tp, s_wn))
    a("s_and_b32 s%d, s%d, 3" % (s_tp, s_tp))
    common_setup()
    sCS = 12
    srd(a, sCS, 54, 55, 28 * 8192, WS_CS)
    for i in range(16): a("v_mov_b32 v%d, 0" % (vCS + i))
    for i in range(4): a("v_mov_b32 v%d, 0x3f803f80" % (vOne + i))
    a("v_lshlrev_b32 v%d, 7, v%d" % (vTch, vL))
    a("s_lshl_b32 s5, s%d, 13" % s_ft); a("s_lshl_b32 s6, s%d, 11" % s_wn); a("s_add_u32 s5, s5, s6")
    a("s_lshl_b32 s6, s%d, 8" % s_mb); a("s_add_u32 s5, s5, s6")
    a("v_lshl_add_u32 v%d, v%d, 4, s5" % (vT2, vG))
    a("s_barrier")
    for i in reads(0, 0): a(i)
    if cfg.get("touch", True):
        a("s_bitcmp0_b32 %d, s%d" % (cfg.get("dmask", 0), s_wn))
        a("s_cbranch_scc1 L_g1_nod")
        a("v_lshlrev_b32 v4, s%d, v%d" % (q + 13, vL))
        a("buffer_load_dword v%d, v4, s[%d:%d], s%d offen" % (vDum, q + 8, q + 11, q + 12))
        a.label("L_g1_nod")
    for k in range(1, 6): stamp(a, cfg, k)
    def signal(tag):
        return ["s_add_u32 s5, s%d, 1" % s_cnt, "s_cmp_lg_u32 s5, s%d" % s_cs, "s_cbranch_scc1 L_g1_nsg%s" % tag,
                "s_waitcnt vmcnt(0)", "s_lshl_b32 s5, s%d, 2" % s_ft, "s_add_u32 s5, s5, %d" % DBG_CS,
                "v_mov_b32 v4, 1", "v_mov_b32 v5, s5", "s_mov_b64 exec, 1",
                "buffer_atomic_add v4, v5, s[%d:%d], 0 offen sc1" % (sDbg, sDbg + 3), "s_mov_b64 exec, -1", "L_g1_nsg%s:" % tag]
    a("s_mov_b32 s%d, 7" % s_cnt)
    a.raw(".p2align 6")
    a.label("L_g1_tloop")
    for s in range(U):
        st = s % 2
        cs = ["s_cmp_lg_u32 s%d, s%d" % (s_cnt, s_cs), "s_cbranch_scc1 L_g1_ncs%d" % s]
        for fi in range(FT):
            for u in range(2):
                c = vr(vCS + 4 * (u * FT + fi), 4)
                cs.append("v_mfma_f32_16x16x32_bf16 %s, %s, %s, %s" % (c, vr(fW(st, u, fi), 4), vr(vOne, 4), c))
        cs.append("L_g1_ncs%d:" % s)
        tc = []
        if cfg.get("touch", True):
            tc = ["s_cmp_lg_u32 s%d, %d" % (s_tp, s), "s_cbranch_scc1 L_g1_ntc%d" % s,
                  "s_bitcmp0_b32 s%d, s%d" % (s_tm, s_cnt), "s_cbranch_scc1 L_g1_ntc%d" % s,
                  "buffer_load_dword v%d, v%d, s[%d:%d], s%d offen" % (vDum, vTch, sTq, sTq + 3, s_to),
                  "s_add_u32 s%d, s%d, s%d" % (s_to, s_to, s_ts), "L_g1_ntc%d:" % s]
        ex = {18: cs, 20: tc}
        if s == 1: ex[-1] = signal("a")
        interval("t", s, False, True, None, extra=ex)
    a("s_cmp_lg_u32 s%d, s%d" % (s_cnt, s_cs))
    a("s_cbranch_scc1 L_g1_nst")
    a("s_mov_b64 exec, 0x0001000100010001" if False else "s_mov_b32 exec_lo, 0x00010001")
    a("s_mov_b32 exec_hi, 0x00010001")
    for k in range(4):
        a("buffer_store_dwordx4 %s, v%d, s[%d:%d], 0 offen offset:%d sc1" % (vr(vCS + 4 * k, 4), vT2, sCS, sCS + 3, k * 64))
    a("s_mov_b64 exec, -1")
    a.label("L_g1_nst")
    a("s_sub_u32 s%d, s%d, 1" % (s_cnt, s_cnt))
    a("s_lshl_b32 s5, s%d, 3" % s_wn)
    a("s_or_b32 s5, s5, s%d" % s_cnt)
    a("s_cmp_eq_u32 s5, 4")
    a("s_cselect_b32 s%d, s16, s%d" % (q, q)); a("s_cselect_b32 s%d, s17, s%d" % (q + 1, q + 1))
    a("s_cselect_b32 s%d, s46, s%d" % (s_to, s_to)); a("s_cselect_b32 s%d, %d, s%d" % (s_ts, 224 * 8192, s_ts))
    a("s_cmp_lg_u32 s%d, 0" % s_cnt)
    a("s_cbranch_scc1 L_g1_tloop")
    interval("t", 28, False, True, None)
    if cfg.get("prio", False):
        a("s_setprio 2")
    a.label("L_g1_tail")
    stamp(a, cfg, 6)
    sSt, sCS2 = 12, 16
    vPa, vPd, vAs, vAc = 3, 4, 6, 8
    b = Asm(); srd(b, sSt, 54, 55, 2048 * 8, WS_ST); srd(b, sCS2, 54, 55, 28 * 8192, WS_CS)
    adr = ["s_lshl_b32 s5, s%d, 2" % s_ft, "s_add_u32 s5, s5, %d" % DBG_CS,
           "v_mov_b32 v%d, %d" % (vPa, DBG_ST), "v_writelane_b32 v%d, s5, 0" % vPa,
           "v_and_b32 v5, 15, v%d" % vL,
           "s_lshl_b32 s5, s%d, 8" % s_mb, "s_lshr_b32 s6, s%d, 2" % s_w, "s_lshl_b32 s6, s6, 7", "s_add_u32 s5, s5, s6", "s_lshl_b32 s5, s5, 3",
           "v_lshl_add_u32 v%d, v5, 3, s5" % vAs,
           "s_lshl_b32 s5, s%d, 13" % s_ft, "s_lshl_b32 s6, s%d, 11" % s_wn, "s_add_u32 s5, s5, s6",
           "v_and_b32 v9, 7, v5", "v_lshlrev_b32 v%d, 8, v9" % vAc, "v_lshrrev_b32 v9, 3, v5", "v_lshl_add_u32 v%d, v9, 7, v%d" % (vAc, vAc),
           "v_lshl_add_u32 v%d, v%d, 4, v%d" % (vAc, vG, vAc), "v_add_u32 v%d, s5, v%d" % (vAc, vAc)]
    hook29 = cont("tail29") if cont else []
    interval("t", 29, False, True, None, extra={17: adr + [x.strip() for x in b.lines], 20: hook29})
    poll = "buffer_load_dword v%d, v%d, s[%d:%d], 0 offen sc1" % (vPd, vPa, sDbg, sDbg + 3)
    interval("t", 30, False, True, None, barrier=False, extra={cfg.get("pollpos", 2): [poll]})
    a("s_mov_b32 s7, 0")
    a.label("L_g1_chk")
    a("s_waitcnt vmcnt(0)")
    a("v_readlane_b32 s5, v%d, 0" % vPd)
    a("v_readlane_b32 s6, v%d, 1" % vPd)
    a("s_min_u32 s5, s5, s6")
    a("s_cmp_ge_u32 s5, 32")
    a("s_cbranch_scc1 L_g1_ok")
    a("s_add_u32 s7, s7, 1")
    a("s_cmp_ge_u32 s7, 0x40000")
    a("s_cbranch_scc1 L_g1_ok")
    a("s_sleep 2")
    a(poll)
    a("s_branch L_g1_chk")
    a.label("L_g1_ok")
    a("v_lshl_add_u32 v0, s%d, 6, v%d" % (s_w, vL))
    vStat, vC = 32, 48
    ld = ["buffer_load_dwordx4 %s, v%d, s[%d:%d], 0 offen sc1" % (vr(vC, 4), vAc, sCS2, sCS2 + 3),
          "buffer_load_dwordx4 %s, v%d, s[%d:%d], 0 offen offset:64 sc1" % (vr(vC + 4, 4), vAc, sCS2, sCS2 + 3)]
    ld += ["buffer_load_dwordx2 %s, v%d, s[%d:%d], 0 offen offset:%d sc1" % (vr(vStat + 2 * xi, 2), vAs, sSt, sSt + 3, xi * 128) for xi in range(8)]
    vHa = 10
    hadr = ["s_lshl_b32 s7, s%d, 1" % s_mb, "s_lshr_b32 s5, s%d, 2" % s_w, "s_add_u32 s7, s7, s5", "s_mul_i32 s7, s7, 112",
            "s_lshl_b32 s5, s%d, 2" % s_ft, "s_add_u32 s7, s7, s5", "s_add_u32 s7, s7, s%d" % s_wn, "s_lshl_b32 s7, s7, 13",
            "v_lshl_add_u32 v%d, v%d, 4, s7" % (vHa, vL), "v_add_u32 v%d, 4096, v%d" % (vHa + 1, vHa)]
    interval("t", 31, False, False, None, barrier=False, extra={0: ld, 12: hadr})
    a("s_setprio 0")
    stamp(a, cfg, 7)
    a("s_waitcnt vmcnt(8)")
    for mode in ("quad_perm:[1,0,3,2]", "quad_perm:[2,3,0,1]", "row_half_mirror"):
        for k in range(8):
            a("v_add_f32_dpp v%d, v%d, v%d %s row_mask:0xf bank_mask:0xf" % (vC + k, vC + k, vC + k, mode))
    vCg, vCu = vC, vC + 8
    for k in range(8):
        a("v_mov_b32 v%d, v%d" % (vCu + k, vC + k))
    for k in range(8):
        a("v_mov_b32_dpp v%d, v%d row_ror:8 row_mask:0xf bank_mask:0x3" % (vCu + k, vC + k))
    for k in range(8):
        a("v_mov_b32_dpp v%d, v%d row_ror:8 row_mask:0xf bank_mask:0xc" % (vC + k, vC + k))
    c1 = -2.0 * math.sqrt(2.0 / math.pi) * math.log2(math.e)
    c2 = c1 * 0.044715
    a("s_mov_b32 s5, 0x%x" % f2u(c1)); a("s_mov_b32 s6, 0x%x" % f2u(c2))
    a("s_waitcnt vmcnt(0)")
    stamp(a, cfg, 8)
    tb = 80
    for xi in range(XT):
        m, r = vStat + 2 * xi, vStat + 2 * xi + 1
        K1, K2, K3 = 12 + 6 * (xi % 2), 14 + 6 * (xi % 2), 16 + 6 * (xi % 2)
        T = tb + (xi % 2) * 16; O = tb + 32 + (xi % 2) * 4
        a("v_mul_f32 v%d, v%d, v%d" % (K3, r, r))
        a("v_mul_f32 v%d, s5, v%d" % (K1, r))
        a("v_mul_f32 v%d, v%d, v%d" % (K2, K3, r))
        a("v_rcp_f32 v%d, v%d" % (K3, K3))
        a("v_mul_f32 v%d, s6, v%d" % (K2, K2))
        G = lambda p: acc(0, p >> 2, xi) + (p & 3)
        Uu = lambda p: acc(1, p >> 2, xi) + (p & 3)
        P2 = lambda x: vr(x, 2)
        if xi < cfg.get("plain_xi", 0):
            for p in range(8): a("v_fma_f32 v%d, -v%d, v%d, v%d" % (G(p), m, vCg + p, G(p)))
            for p in range(8): a("v_mul_f32 v%d, v%d, v%d" % (T + p, G(p), G(p)))
            for p in range(8): a("v_fma_f32 v%d, v%d, v%d, v%d" % (T + p, T + p, K2, K1))
            for p in range(8): a("v_mul_f32 v%d, v%d, v%d" % (T + p, T + p, G(p)))
            for p in range(8):
                a("v_exp_f32 v%d, v%d" % (T + p, T + p))
                a("v_fma_f32 v%d, -v%d, v%d, v%d" % (Uu(p), m, vCu + p, Uu(p)))
            for p in range(8): a("v_fma_f32 v%d, v%d, v%d, v%d" % (T + p, T + p, K3, K3))
            for p in range(8):
                a("v_rcp_f32 v%d, v%d" % (T + p, T + p))
                a("v_mul_f32 v%d, v%d, v%d" % (G(p), G(p), Uu(p)))
            for p in range(8): a("v_mul_f32 v%d, v%d, v%d" % (G(p), G(p), T + p))
        else:
            E = range(0, 8, 2)
            for p in E: a("v_pk_fma_f32 %s, %s, %s, %s op_sel_hi:[0,1,1] neg_lo:[1,0,0] neg_hi:[1,0,0]" % (P2(G(p)), P2(m), P2(vCg + p), P2(G(p))))
            for p in E: a("v_pk_mul_f32 %s, %s, %s" % (P2(T + p), P2(G(p)), P2(G(p))))
            for p in E: a("v_pk_fma_f32 %s, %s, %s, %s op_sel_hi:[1,0,0]" % (P2(T + p), P2(T + p), P2(K2), P2(K1)))
            for p in E: a("v_pk_mul_f32 %s, %s, %s" % (P2(T + p), P2(T + p), P2(G(p))))
            ev = cfg.get("ev", 0)
            if ev == 0:
                for p in range(8):
                    a("v_exp_f32 v%d, v%d" % (T + p, T + p))
                    if p % 2: a("v_pk_fma_f32 %s, %s, %s, %s op_sel_hi:[0,1,1] neg_lo:[1,0,0] neg_hi:[1,0,0]" % (P2(Uu(p - 1)), P2(m), P2(vCu + p - 1), P2(Uu(p - 1))))
                for p in E: a("v_pk_fma_f32 %s, %s, %s, %s op_sel_hi:[1,0,0]" % (P2(T + p), P2(T + p), P2(K3), P2(K3)))
                for p in range(8):
                    a("v_rcp_f32 v%d, v%d" % (T + p, T + p))
                    if p % 2: a("v_pk_mul_f32 %s, %s, %s" % (P2(G(p - 1)), P2(G(p - 1)), P2(Uu(p - 1))))
            else:
                for p in E: a("v_pk_fma_f32 %s, %s, %s, %s op_sel_hi:[0,1,1] neg_lo:[1,0,0] neg_hi:[1,0,0]" % (P2(Uu(p)), P2(m), P2(vCu + p), P2(Uu(p))))
                for p in E: a("v_pk_mul_f32 %s, %s, %s" % (P2(G(p)), P2(G(p)), P2(Uu(p))))
                for p in range(8): a("v_exp_f32 v%d, v%d" % (T + p, T + p))
                if ev == 2: a("s_nop 3")
                for p in E: a("v_pk_fma_f32 %s, %s, %s, %s op_sel_hi:[1,0,0]" % (P2(T + p), P2(T + p), P2(K3), P2(K3)))
                for p in range(8): a("v_rcp_f32 v%d, v%d" % (T + p, T + p))
                if ev == 2: a("s_nop 3")
            for p in E: a("v_pk_mul_f32 %s, %s, %s" % (P2(G(p)), P2(G(p)), P2(T + p)))
        for p in range(4): a("v_cvt_pk_bf16_f32 v%d, v%d, v%d" % (O + p, G(2 * p), G(2 * p + 1)))
        a("buffer_store_dwordx4 %s, v%d, s[%d:%d], 0 offen offset:%d %s" % (vr(O, 4), vHa if xi < 4 else vHa + 1, sH, sH + 3, (xi & 3) * 1024, cfg.get("hstore", "sc1")))
    a("s_setprio 0")
    stamp(a, cfg, 9)
    lines, added = hazard.pad(a.lines)
    print("g1f: %d lines, %d nop states added" % (len(lines), added))
    a0.lines += lines
```

```python
from asmlib import *
from g1 import WS_XN, WS_H, WS_X1, WS_V, WS_S, WS_DBG, stamp, stamps_out
import tables, hazard, struct
f2u = lambda x: struct.unpack("<I", struct.pack("<f", x))[0]
WS_ST = 33 << 20

def merge(*streams):
    streams = [s for s in streams if s]
    n = [len(s) for s in streams]
    pos = [0] * len(streams)
    out = []
    tot = sum(n)
    for _ in range(tot):
        best = min((i for i in range(len(streams)) if pos[i] < n[i]), key=lambda i: (pos[i] + 0.5) / n[i])
        out.append(streams[best][pos[best]]); pos[best] += 1
    return out

def mfma(d, A, B, c=None):
    return "v_mfma_f32_16x16x32_bf16 %s, %s, %s, %s" % (vr(d, 4), A, B, "0" if c is None else vr(c, 4))
V4 = lambda b: vr(b, 4)
A4 = lambda b: ar(b, 4)
def cvt(d, x, y):
    return "v_cvt_pk_bf16_f32 v%d, v%d, v%d" % (d, x, y)
def cmul(re, im, c, s, t, conj_out=False):
    l = []
    for p in range(4):
        l.append("v_mul_f32 v%d, v%d, v%d" % (t + p, im + p, s + p))
        l.append("v_mul_f32 v%d, v%d, v%d" % (t + 4 + p, re + p, s + p))
    for p in range(4):
        l.append("v_fma_f32 v%d, v%d, v%d, -v%d" % (re + p, re + p, c + p, t + p))
        if conj_out:
            l.append("v_fma_f32 v%d, -v%d, v%d, -v%d" % (im + p, im + p, c + p, t + 4 + p))
        else:
            l.append("v_fma_f32 v%d, v%d, v%d, v%d" % (im + p, im + p, c + p, t + 4 + p))
    return l
def epos(E, inv, j):
    return E + (4 * (inv >> 2) + j) * 4 + (inv & 3)
def exchange(E):
    l1, l2 = [], []
    for j in range(4):
        for jj in range(4):
            R = [E + (4 * g + j) * 4 + jj for g in range(4)]
            l1.append("v_permlane32_swap_b32 v%d, v%d" % (R[0], R[2]))
            l1.append("v_permlane32_swap_b32 v%d, v%d" % (R[1], R[3]))
            l2.append("v_permlane16_swap_b32 v%d, v%d" % (R[0], R[1]))
            l2.append("v_permlane16_swap_b32 v%d, v%d" % (R[2], R[3]))
    return l1 + l2
def planar_pack(d, re, im):
    return [cvt(d, re, re + 1), cvt(d + 1, re + 2, re + 3), cvt(d + 2, im, im + 1), cvt(d + 3, im + 2, im + 3)]


def gen_spec(a0, cfg):
    a = Asm()
    ST = cfg.get("spst", "sc1")
    txt, tbytes = tables.asm_text("spec_tables")
    cfg.setdefault("_tables", []).append(txt)
    sX, sT, sX1, sV, sS, sW, sSt, sDbg = 8, 12, 16, 20, 24, 28, 32, 40
    s_w, s_lds, s_q, s_p0 = 44, 45, 46, 47
    s_n0, s_sel, s_t, s_g = 38, 39, 48, 49
    s_ki, s_wx, s_wsp, s_cb = 50, 51, 7, 100
    if cfg.get('stamps'): s_cb = 82
    sMean = 84
    vL, vG, vN, vT0, vT1, vT2, vT3 = 1, 2, 3, 4, 5, 6, 7
    vL16, vRd, vTr, vSt, vW, vMask, vDel = 8, 9, 10, 11, 12, 13, 14
    LA1 = 131072
    ns = [0]
    def st():
        stamp(a, cfg, ns[0]); ns[0] += 1
    a("s_load_dwordx2 s[4:5], s[0:1], 0      ; x")
    a("s_load_dwordx4 s[92:95], s[0:1], 8    ; w_r, w_i")
    a("s_load_dwordx4 s[52:55], s[0:1], 64")
    st()
    a("s_getpc_b64 s[6:7]")
    a.label("L_sp_pc")
    a("s_add_u32 s%d, s6, spec_tables-L_sp_pc" % sT)
    a("s_addc_u32 s%d, s7, 0" % (sT + 1))
    a("s_mov_b32 s%d, %d" % (sT + 2, tbytes))
    a("s_mov_b32 s%d, 0x20000" % (sT + 3))
    a("v_lshrrev_b32 v%d, 6, v0" % vT0)
    a("v_and_b32 v%d, 63, v0" % vL)
    a("v_readfirstlane_b32 s%d, v%d" % (s_w, vT0))
    a("v_lshrrev_b32 v%d, 4, v%d" % (vG, vL))
    a("v_and_b32 v%d, 15, v%d" % (vN, vL))
    a("v_lshlrev_b32 v%d, 4, v%d" % (vL16, vL))
    a("s_mov_b32 s96, s6"); a("s_mov_b32 s97, s7")
    def ldtab(q, dst, sdyn=None):
        pre = "s_mov_b32 s3, %d" % ((q >> 2) * 4096) if sdyn is None else "s_add_u32 s3, s%d, %d" % (sdyn, (q >> 2) * 4096)
        return [pre, "buffer_load_dwordx4 %s, v%d, s[%d:%d], s3 offen offset:%d" % (V4(dst), vL16, sT, sT + 3, (q & 3) * 1024)]
    a("s_and_b32 s%d, s%d, 3" % (s_g, s_w))
    a("s_lshr_b32 s%d, s%d, 2" % (s_t, s_w))
    a("s_lshl_b32 s%d, s%d, 15" % (s_lds, s_g))
    a("s_and_b32 s%d, s2, 15" % s_q)
    a("s_lshr_b32 s%d, s2, 4" % s_p0)
    a("s_lshl_b32 s%d, s%d, 3" % (s_p0, s_p0))
    a("s_lshl_b32 s3, s%d, 1" % s_g)
    a("s_add_u32 s%d, s%d, s3" % (s_p0, s_p0))
    a("s_lshl_b32 s%d, s%d, 4" % (s_n0, s_p0))
    a("s_add_u32 s%d, s%d, s%d" % (s_n0, s_n0, s_q))
    a("s_lshl_b32 s6, s%d, 14" % s_t)
    a("s_add_u32 s6, s6, s%d" % s_lds)
    a("s_lshl_b32 s7, s%d, 4" % s_t)
    a("s_add_u32 s7, s7, s%d" % s_n0)
    a("s_lshl_b32 s7, s7, 11")
    a("s_waitcnt lgkmcnt(0)")
    srd(a, sX, 4, 5, 4 << 20)
    for i in range(8):
        a("s_add_u32 s3, s7, %d" % (256 * i * 2048))
        a("s_add_u32 m0, s6, %d" % (i * 2048))
        a("buffer_load_dwordx4 v%d, s[%d:%d], s3 offen %s lds" % (vL16, sX, sX + 3, cfg.get("sxfl", "")))
        a("buffer_load_dwordx4 v%d, s[%d:%d], s3 offen offset:1024 %s lds" % (vL16, sX, sX + 3, cfg.get("sxfl", "")))
    vTw, vM, vBa, vAb, vAs = 16, 24, 32, 48, 56
    a("s_lshl_b32 s4, s%d, 12" % s_t)
    a("s_lshl_b32 s5, s%d, 11" % s_t)
    for q in range(4):
        for x in ldtab(q, vBa + 4 * q, 4): a(x)
    for q in range(4):
        for x in ldtab(8 + q, vAb + 4 * q): a(x)
    for q in range(2):
        for x in ldtab(12 + q, vTw + 4 * q, 5): a(x)
    a("v_add_u32 v%d, s6, v%d" % (vRd, vL16))
    a("v_lshl_add_u32 v%d, v%d, 3, s%d" % (vTr, vL, s_lds))
    srd(a, sX1, 54, 55, 4 << 20, WS_X1)
    srd(a, sV, 54, 55, 4 << 20, WS_V)
    srd(a, sS, 54, 55, 4 << 20, WS_S)
    srd(a, sSt, 54, 55, 2048 * 8, WS_ST)
    srd(a, sDbg, 52, 53, 256)
    a("s_cmp_eq_u32 s%d, 0" % s_t)
    a("s_cselect_b32 s%d, s92, s94" % sW)
    a("s_cselect_b32 s%d, s93, s95" % (sW + 1))
    a("s_mov_b32 s%d, %d" % (sW + 2, 2048 * 513 * 2))
    a("s_mov_b32 s%d, 0x20000" % (sW + 3))
    a("s_and_b32 s3, s2, 3")
    a("s_lshl_b32 s3, s3, 1")
    a("s_and_b32 s4, s%d, 1" % s_w)
    a("s_add_u32 s%d, s3, s4" % s_ki)
    a("s_lshr_b32 s3, s2, 2")
    a("s_sub_u32 s4, 15, s3")
    a("s_cmp_lt_u32 s%d, 2" % s_g)
    a("s_cselect_b32 s5, s3, s4")
    a("s_lshl_b32 s%d, s5, 1" % s_cb)
    a("s_and_b32 s4, s%d, 1" % s_w)
    a("s_add_u32 s%d, s%d, s4" % (s_cb, s_cb))
    a("s_lshl_b32 s3, s5, 6")
    a("s_sub_u32 s4, 993, s3")
    a("s_sub_u32 s6, 992, s3")
    a("s_cmp_lt_u32 s5, 8")
    a("s_cselect_b32 s4, s3, s4")
    a("s_cselect_b32 s6, s3, s6")
    a("s_cselect_b32 s%d, 0, 3" % s_wx)
    a("s_mov_b32 s%d, 0x01000302" % s_sel)
    a("s_cselect_b32 s%d, 0x07060504, s%d" % (s_sel, s_sel))
    a("s_cmp_eq_u32 s5, 0")
    a("s_cselect_b32 s6, 512, s6")
    a("s_lshl_b32 s%d, s6, 1" % s_wsp)
    a("v_lshrrev_b32 v%d, 2, v%d" % (vT0, vL))
    a("v_and_b32 v%d, 3, v%d" % (vT1, vL))
    a("v_lshl_add_u32 v%d, v%d, 3, s%d" % (vT2, vT0, s_ki))
    a("v_mul_u32_u24 v%d, 1026, v%d" % (vT2, vT2))
    a("v_lshl_add_u32 v%d, v%d, 4, v%d" % (vT2, vT1, vT2))
    a("s_lshl_b32 s4, s4, 1")
    a("v_add_u32 v%d, s4, v%d" % (vW, vT2))
    Wraw = 192
    wl = ["s_mov_b32 s3, %d\nbuffer_load_dwordx4 %s, v%d, s[%d:%d], s3 offen %s" % (128 * u * 1026, V4(Wraw + 4 * u), vW, sW, sW + 3, cfg.get("swfl", "")) for u in range(16)]
    if cfg.get("codepf", True):
        a("s_mov_b32 s98, spec_tables-L_sp_pc+%d" % tbytes); a("s_mov_b32 s99, 0x20000")
        a("v_lshlrev_b32 v%d, 7, v0" % vT1)
        a("buffer_load_dword v127, v%d, s[96:99], 0 offen" % vT1)
        a("s_mov_b32 s3, 65536")
        a("buffer_load_dword v126, v%d, s[96:99], s3 offen" % vT1)
    npf = (2 if cfg.get("codepf", True) else 0)
    vC, vS = 88, 92
    a("v_lshrrev_b32 v%d, 1, v%d" % (vT0, vG))
    a("v_lshlrev_b32 v%d, 4, v%d" % (vT1, vT0))
    a("v_and_b32 v%d, 1, v%d" % (vT2, vG))
    a("v_lshl_add_u32 v%d, v%d, 10, v%d" % (vT1, vT2, vT1))
    a("v_add_u32 v%d, s%d, v%d" % (vT1, s_n0, vT1))
    a("v_lshrrev_b32 v%d, 1, v%d" % (vT2, vN))
    a("s_mov_b32 s3, 0x%x" % f2u(1.0 / 2048))
    for jj in range(4):
        a("v_add_u32 v%d, %d, v%d" % (vT3, 256 * jj, vT1))
        a("v_mul_u32_u24 v%d, v%d, v%d" % (vT3, vT3, vT2))
        a("v_and_b32 v%d, 0x7ff, v%d" % (vT3, vT3))
        a("v_cvt_f32_u32 v%d, v%d" % (vT3, vT3))
        a("v_mul_f32 v%d, s3, v%d" % (vT3, vT3))
        a("v_cos_f32 v%d, v%d" % (vC + jj, vT3))
        a("v_sin_f32 v%d, v%d" % (vS + jj, vT3))
    a("v_and_b32 v%d, 1, v%d" % (vT1, vN))
    a("v_cmp_eq_u32 vcc, v%d, v%d" % (vT0, vT1))
    a("v_cndmask_b32 v%d, 0, 1.0, vcc" % vDel)
    a("v_or_b32 v%d, s%d, v%d" % (vT1, s_t, vN))
    a("v_cmp_eq_u32 vcc, 0, v%d" % vT1)
    a("v_cndmask_b32 v%d, 0, 1.0, vcc" % vMask)
    a("s_mov_b64 s[36:37], vcc")
    Sb, Qb, Lb = 96, 104, 128
    a("s_waitcnt vmcnt(%d)" % (10 + npf))
    st()
    for r in range(8):
        a("ds_read_b128 %s, v%d offset:%d" % (V4(Lb + 8 * r), vRd, r * 2048))
        a("ds_read_b128 %s, v%d offset:%d" % (V4(Lb + 8 * r + 4), vRd, r * 2048 + 1024))
    for r in range(8):
        a("s_waitcnt lgkmcnt(%d)" % (14 - 2 * r))
        a("v_mov_b32 v%d, 0" % (Sb + r))
        a("v_mov_b32 v%d, 0" % (Qb + r))
        for k in range(8):
            a("v_dot2c_f32_bf16 v%d, 0x3f803f80, v%d" % (Sb + r, Lb + 8 * r + k))
            a("v_dot2c_f32_bf16 v%d, v%d, v%d" % (Qb + r, Lb + 8 * r + k, Lb + 8 * r + k))
    for B in (Sb, Qb):
        for r in range(4): a("v_permlane32_swap_b32 v%d, v%d" % (B + r, B + r + 4))
    for B in (Sb, Qb):
        for r in range(4): a("v_add_f32 v%d, v%d, v%d" % (B + r, B + r, B + r + 4))
    for B in (Sb, Qb):
        for r in range(2): a("v_permlane16_swap_b32 v%d, v%d" % (B + r, B + r + 2))
    for B in (Sb, Qb):
        for r in range(2): a("v_add_f32 v%d, v%d, v%d" % (B + r, B + r, B + r + 2))
    for ror in (8, 4, 2, 1):
        for B in (Sb, Qb):
            for r in range(2):
                a("v_add_f32_dpp v%d, v%d, v%d row_ror:%d row_mask:0xf bank_mask:0xf" % (B + r, B + r, B + r, ror))
    a("s_mov_b32 s3, 0x%x" % f2u(1.0 / 1024))
    a("s_mov_b32 s4, 0x%x" % f2u(1e-5))
    for r in range(2):
        a("v_mul_f32 v%d, s3, v%d" % (Sb + r, Sb + r))
        a("v_mul_f32 v%d, s3, v%d" % (Qb + r, Qb + r))
    for r in range(2): a("v_fma_f32 v%d, -v%d, v%d, v%d" % (Qb + r, Sb + r, Sb + r, Qb + r))
    for r in range(2): a("v_max_f32 v%d, 0, v%d" % (Qb + r, Qb + r))
    for r in range(2): a("v_add_f32 v%d, s4, v%d" % (Qb + r, Qb + r))
    for r in range(2): a("v_rsq_f32 v%d, v%d" % (Qb + r, Qb + r))
    a("s_lshl_b32 s3, s%d, 7" % s_g)
    a("s_add_u32 s3, s3, %d" % LA1)
    a("s_lshl_b32 s4, s%d, 5" % s_t)
    a("s_add_u32 s4, s4, s3")
    a("v_lshl_add_u32 v%d, v%d, 3, s4" % (vT0, vG))
    a("v_lshl_add_u32 v%d, v%d, 4, s3" % (vT1, vG))
    a("ds_write_b64 v%d, %s" % (vT0, vr(Sb, 2)))
    a("ds_write_b64 v%d, %s offset:64" % (vT0, vr(Qb, 2)))
    if cfg.get("fold"):
        a("v_cmp_eq_u32 vcc, 1, v%d" % vN)
        a("v_cndmask_b32 v%d, v%d, v%d, vcc" % (Sb + 2, Sb, Sb + 1))
        a("v_cndmask_b32 v%d, v%d, v%d, vcc" % (Sb + 3, Qb, Qb + 1))
        a("v_lshl_add_u32 v%d, v%d, 1, v%d" % (vT2, vG, vN))
        a("s_lshl_b32 s3, s%d, 4" % s_t)
        a("s_add_u32 s3, s3, s%d" % s_n0)
        a("s_lshl_b32 s3, s3, 3")
        a("v_lshl_add_u32 v%d, v%d, 11, s3" % (vT2, vT2))
        a("v_cmp_gt_u32 vcc, 2, v%d" % vN)
        a("s_mov_b64 exec, vcc")
        a("buffer_store_dwordx2 %s, v%d, s[%d:%d], 0 offen sc1" % (vr(Sb + 2, 2), vT2, sSt, sSt + 3))
        a("s_mov_b64 exec, -1")
    a("s_waitcnt lgkmcnt(0)")
    a("s_barrier")
    a("ds_read_b128 %s, v%d" % (V4(112), vT1))
    a("ds_read_b128 %s, v%d offset:64" % (V4(116), vT1))
    a("s_mov_b32 s5, 0x%x" % f2u(-64.0))
    a("s_waitcnt lgkmcnt(0) vmcnt(0)" if cfg.get("fold") else "s_waitcnt lgkmcnt(0)")
    a("s_barrier")
    if cfg.get("fold"):
        a("s_cmp_lg_u32 s%d, 0" % s_w)
        a("s_cbranch_scc1 L_sp_nost")
        a("v_mov_b32 v%d, 1" % vT0)
        a("v_mov_b32 v%d, 12" % vT1)
        a("s_mov_b64 exec, 1")
        a("buffer_atomic_add v%d, v%d, s[%d:%d], 0 offen sc1" % (vT0, vT1, sDbg, sDbg + 3))
        a("s_mov_b64 exec, -1")
        a.label("L_sp_nost")
    a("s_lshl_b32 s4, s%d, 12" % s_w)
    a("s_add_u32 s3, s4, %d" % (16 * 1024))
    a("s_add_u32 m0, s4, %d" % LA1)
    for k in range(4):
        a("buffer_load_dwordx4 v%d, s[%d:%d], s3 offen offset:%d lds" % (vL16, sT, sT + 3, k * 1024))
    for r in range(4): a("v_mul_f32 v%d, s5, v%d" % (112 + r, 112 + r))
    for r in range(4): a("v_mul_f32 v%d, v%d, v%d" % (116 + r, vDel, 116 + r))
    for rho in range(16):
        a("v_readlane_b32 s%d, v%d, %d" % (sMean + rho, 112 + (rho & 3), 16 * (rho >> 2)))
    for r in range(4):
        a("v_mul_f32 v%d, v%d, v%d" % (vC + r, vC + r, 116 + r))
        a("v_mul_f32 v%d, v%d, v%d" % (vS + r, vS + r, 116 + r))
    for r in range(4):
        a("v_cvt_pk_bf16_f32 v%d, v%d, v%d" % (vM + r, vC + r, vS + r))
        a("v_cvt_pk_bf16_f32 v%d, -v%d, v%d" % (vM + 4 + r, vS + r, vC + r))
    st()
    E = 128
    Xb = [64, 72]; tmp8 = 80; Db = [88, 96]; D2 = 104; Pb = [120, 124]
    def S0(r):
        xb = Xb[r % 2]
        return ["ds_read_b64_tr_b16 %s, v%d offset:%d" % (vr(xb + 4 * ks + 2 * jj, 2), vTr, r * 2048 + ks * 1024 + jj * 512) for ks in range(2) for jj in range(2)]
    def S1(r):
        xb = Xb[r % 2]; D = Db[r % 2]
        return [mfma(D, V4(xb), V4(vBa)), mfma(D + 4, V4(xb), V4(vBa + 8)), mfma(D, V4(xb + 4), V4(vBa + 4), D), mfma(D + 4, V4(xb + 4), V4(vBa + 12), D + 4)]
    def S2(r):
        D = Db[r % 2]; P = Pb[r % 2]
        l = ["v_fmac_f32 v%d, s%d, v%d" % (D + j, sMean + r, vMask) for j in range(4)]
        l += cmul(D, D + 4, vTw, vTw + 4, tmp8)
        l += [cvt(P + j, D + j, D + 4 + j) for j in range(4)]
        return l
    def S3(r):
        P = Pb[r % 2]
        return [mfma(D2, V4(vAb), V4(P)), mfma(D2 + 4, V4(vAb + 4), V4(P)), mfma(D2 + 8, V4(vAs), V4(P)), mfma(D2 + 12, V4(vAs + 4), V4(P))]
    def S4(r):
        l = [cvt(epos(E, r, j), D2 + j, D2 + 4 + j) for j in range(4)]
        l += ["\n".join(["s_mov_b64 exec, s[36:37]"] + [cvt(epos(E, r, j), D2 + 8 + j, D2 + 12 + j) for j in range(4)] + ["s_mov_b64 exec, -1"])]
        return l
    a("s_waitcnt vmcnt(4)")
    for x in S0(0) + S0(1): a(x)
    a("s_waitcnt lgkmcnt(4)")
    for x in S1(0): a(x)
    for k in range(0, 17):
        a("s_waitcnt lgkmcnt(0)")
        rd = S0(k + 2) if k + 2 < 16 else []
        mf = (S3(k - 1) if k >= 1 else []) + (S1(k + 1) if k + 1 < 16 else [])
        va = (S2(k) if k < 16 else []) + (S4(k - 1) if k >= 1 else [])
        for x in rd: a(x)
        for x in (merge(mf, va, wl[k:k + 1]) if k < 15 else mf + va + wl[k:k + 1]): a(x)
    st()
    a("v_lshl_add_u32 v%d, v%d, 3, s%d" % (vT2, vL, s_ki))
    a("v_mul_u32_u24 v%d, 1026, v%d" % (vT2, vT2))
    a("v_add_u32 v%d, s%d, v%d" % (vT2, s_wsp, vT2))
    for u in range(4):
        a("s_mov_b32 s3, %d" % (512 * u * 1026))
        a("buffer_load_ushort v%d, v%d, s[%d:%d], s3 offen" % (120 + u, vT2, sW, sW + 3))
    for x in exchange(E): a(x)
    a("v_lshlrev_b32 v%d, 20, v%d" % (vSt, vG))
    a("v_lshl_add_u32 v%d, v%d, 4, v%d" % (vSt, vN, vSt))
    a("s_lshl_b32 s3, s%d, 11" % s_q)
    a("s_lshl_b32 s4, s%d, 7" % s_p0)
    a("s_add_u32 s3, s3, s4")
    a("s_lshl_b32 s4, s%d, 15" % s_t)
    a("s_add_u32 s3, s3, s4")
    a("v_add_u32 v%d, s3, v%d" % (vSt, vSt))
    def stage(n, srcf, cre, cim, postf, Dbase, nD=4, pre=None):
        def M(i):
            D = Dbase + 8 * (i % nD)
            return (pre(i) if pre else []) + [mfma(D, cre(i), srcf(i)), mfma(D + 4, cim(i), srcf(i))]
        for x in M(0) + M(1): a(x)
        for i in range(n):
            for x in merge(M(i + 2) if i + 2 < n else [], postf(i, Dbase + 8 * (i % nD))): a(x)
    def post_store(Ob, sd, step):
        def f(i, D):
            O = Ob + 4 * (i % 4)
            return [cvt(O + j, D + j, D + 4 + j) for j in range(4)] + ["s_mov_b32 s3, %d\nbuffer_store_dwordx4 %s, v%d, s[%d:%d], s3 offen %s" % (i * step, V4(O), vSt, sd, sd + 3, ST)]
        return f
    stage(16, lambda i: V4(E + 4 * i), lambda i: V4(vM), lambda i: V4(vM + 4), post_store(96, sX1, 65536), 64)
    st()
    a("s_barrier")
    a("s_lshl_b32 s4, s%d, 14" % s_t)
    a("s_add_u32 s4, s4, s%d" % s_lds)
    a("v_lshrrev_b32 v%d, 2, v%d" % (vT0, vL))
    a("v_and_b32 v%d, 3, v%d" % (vT1, vL))
    a("v_xor_b32 v%d, s%d, v%d" % (vT1, s_wx, vT1))
    a("v_lshlrev_b32 v%d, 4, v%d" % (vT1, vT1))
    a("v_lshl_add_u32 v%d, v%d, 10, v%d" % (vT1, vT0, vT1))
    a("v_add_u32 v%d, s4, v%d" % (vT1, vT1))
    a("v_lshlrev_b32 v%d, 10, v%d" % (vT2, vN))
    a("v_lshl_add_u32 v%d, v%d, 6, v%d" % (vT2, vG, vT2))
    a("v_add_u32 v%d, s4, v%d" % (vT2, vT2))
    a("s_waitcnt vmcnt(16)")
    for u in range(16):
        src = Wraw + 4 * u; dst = 64 + 4 * (u % 4)
        for j in range(4):
            a("v_perm_b32 v%d, v%d, v%d, s%d" % (dst + j, src + j, src + 3 - j, s_sel))
        a("ds_write_b128 v%d, %s offset:%d" % (vT1, V4(dst), u * 64))
    for u in range(4):
        a("ds_write_b16 v%d, v%d offset:%d" % (vT2, 120 + u, u * 256))
    nsync = [0]
    def sync(off, between):
        lab = "L_sp_poll%d" % nsync[0]; lab2 = "L_sp_done%d" % nsync[0]; lab3 = "L_sp_skip%d" % nsync[0]
        nsync[0] += 1
        a("s_waitcnt vmcnt(0) lgkmcnt(0)")
        a("s_barrier")
        a("s_cmp_lg_u32 s%d, 0" % s_w)
        a("s_cbranch_scc1 %s" % lab3)
        a("v_mov_b32 v%d, 1" % vT0)
        a("v_mov_b32 v%d, %d" % (vT1, off))
        a("s_mov_b64 exec, 1")
        a("buffer_atomic_add v%d, v%d, s[%d:%d], 0 offen sc1" % (vT0, vT1, sDbg, sDbg + 3))
        a("s_mov_b64 exec, -1")
        a.label(lab3)
        st()
        for x in between: a(x)
        a("s_cmp_lg_u32 s%d, 0" % s_w)
        a("s_cbranch_scc1 %s" % lab2)
        a("v_mov_b32 v%d, %d" % (vT1, off))
        a("s_mov_b32 s3, 0")
        a.label(lab)
        a("buffer_load_dword v%d, v%d, s[%d:%d], 0 offen sc1" % (vT0, vT1, sDbg, sDbg + 3))
        a("s_add_u32 s3, s3, 1")
        a("s_waitcnt vmcnt(0)")
        a("v_readfirstlane_b32 s4, v%d" % vT0)
        a("s_cmp_ge_u32 s3, 0x40000")
        a("s_cbranch_scc1 %s" % lab2)
        a("s_cmp_ge_u32 s4, 32")
        a("s_cbranch_scc1 %s" % lab2)
        a("s_sleep 1")
        a("s_branch %s" % lab)
        a.label(lab2)
        a("s_barrier")
        st()
    vA2 = 16
    vWr, vA1r = 12, 13
    pre = []
    for q in range(2): pre += ldtab(48 + q, vA2 + 4 * q)
    pre += ["v_lshrrev_b32 v%d, 2, v%d" % (vT2, vL), "v_lshlrev_b32 v%d, 6, v%d" % (vT2, vT2),
            "v_and_b32 v%d, 3, v%d" % (vT3, vL), "v_lshl_add_u32 v%d, v%d, 3, v%d" % (vT2, vT3, vT2),
            "s_and_b32 s5, s%d, 2" % s_w, "s_or_b32 s5, s5, s%d" % s_t, "s_lshl_b32 s5, s5, 15",
            "s_and_b32 s6, s%d, 1" % s_w, "s_lshl_b32 s6, s6, 5", "s_add_u32 s5, s5, s6",
            "v_add_u32 v%d, s5, v%d" % (vWr, vT2),
            "v_add_u32 v%d, %d, v%d" % (vA1r, LA1, vL16),
            "s_and_b32 s5, s2, 3", "s_mov_b32 s6, s%d" % s_cb,
            "v_lshlrev_b32 v%d, 9, v%d" % (vTr, vG), "v_lshl_add_u32 v%d, v%d, 4, v%d" % (vTr, vN, vTr),
            "s_lshl_b32 s92, s5, 20", "s_lshl_b32 s93, s6, 15", "s_add_u32 s92, s92, s93",
            "s_lshl_b32 s93, s%d, 3" % s_t, "s_add_u32 s92, s92, s93",
            "v_add_u32 v%d, s92, v%d" % (vRd, vTr),
            "v_lshlrev_b32 v%d, 16, v%d" % (vSt, vG), "v_lshl_add_u32 v%d, v%d, 4, v%d" % (vSt, vN, vSt),
            "s_lshl_b32 s92, s5, 9", "s_lshl_b32 s93, s%d, 8" % s_t, "s_add_u32 s92, s92, s93",
            "s_lshl_b32 s93, s6, 11", "s_add_u32 s92, s92, s93",
            "v_add_u32 v%d, s92, v%d" % (vSt, vSt), "s_mov_b32 s6, 0xffff0000"]
    sync(0, pre)
    def ld_in(In, sd, step):
        for q in range(16):
            a("s_mov_b32 s3, %d" % (q * step))
            a("buffer_load_dwordx2 %s, v%d, s[%d:%d], s3 offen sc1" % (vr(In + 4 * q, 2), vRd, sd, sd + 3))
            a("buffer_load_dwordx2 %s, v%d, s[%d:%d], s3 offen offset:256 sc1" % (vr(In + 4 * q + 2, 2), vRd, sd, sd + 3))
    In, Ea, Eb = 128, 192, 128
    ld_in(In, sX1, 2048)
    A1b = lambda i: 24 + 8 * (i % 3)
    rdA1 = lambda i: ["ds_read_b128 %s, v%d offset:%d" % (V4(A1b(i) + 4 * h), vA1r, i * 2048 + h * 1024) for h in range(2)]
    for x in rdA1(0) + rdA1(1): a(x)
    def pre1(i):
        l = rdA1(i + 2) if i + 2 < 16 else []
        return ["\n".join(l + ["s_waitcnt vmcnt(%d) lgkmcnt(%d)" % (30 - 2 * i, 2 * (min(15, i + 2) - i))])]
    stage(16, lambda i: V4(In + 4 * i), lambda i: V4(A1b(i)), lambda i: V4(A1b(i) + 4),
          lambda i, D: [cvt(epos(Ea, i, j), D + j, D + 4 + j) for j in range(4)], 64, 4, pre1)
    st()
    Wb = lambda i: 48 + 4 * (i % 2)
    rdW = lambda i: ["ds_read_b64_tr_b16 %s, v%d offset:%d" % (vr(Wb(i) + 2 * arr, 2), vWr, arr * 16384 + i * 1024) for arr in range(2)]
    for x in rdW(0): a(x)
    for x in exchange(Ea): a(x)
    D2b = lambda i: 64 + 8 * (i % 2)
    D3b = lambda i: 80 + 8 * (i % 2)
    Pm = lambda i: 96 + 4 * (i % 2)
    wr, wi, tm = 56, 60, 104
    def M1(i):
        return [mfma(D2b(i), V4(vA2), V4(Ea + 4 * i)), mfma(D2b(i) + 4, V4(vA2 + 4), V4(Ea + 4 * i))]
    def V1(i):
        D = D2b(i); w = Wb(i)
        l = ["v_lshlrev_b32 v%d, 16, v%d" % (wr, w), "v_and_b32 v%d, s6, v%d" % (wr + 1, w),
             "v_lshlrev_b32 v%d, 16, v%d" % (wr + 2, w + 1), "v_and_b32 v%d, s6, v%d" % (wr + 3, w + 1),
             "v_lshlrev_b32 v%d, 16, v%d" % (wi, w + 2), "v_and_b32 v%d, s6, v%d" % (wi + 1, w + 2),
             "v_lshlrev_b32 v%d, 16, v%d" % (wi + 2, w + 3), "v_and_b32 v%d, s6, v%d" % (wi + 3, w + 3)]
        l += cmul(D, D + 4, wr, wi, tm, conj_out=True)
        l += [cvt(Pm(i) + j, D + j, D + 4 + j) for j in range(4)]
        return l
    def M2(i):
        return [mfma(D3b(i), V4(A1b(i)), V4(Pm(i))), mfma(D3b(i) + 4, V4(A1b(i) + 4), V4(Pm(i)))]
    def V2(i):
        return [cvt(epos(Eb, i, j), D3b(i) + j, D3b(i) + 4 + j) for j in range(4)]
    for x in M1(0): a(x)
    for i in range(17):
        a("s_waitcnt lgkmcnt(0)")
        for x in (rdW(i + 1) if i + 1 < 16 else []) + (rdA1(i) if i < 16 else []): a(x)
        mf = (M2(i - 1) if i >= 1 else []) + (M1(i + 1) if i + 1 < 16 else [])
        va = (V1(i) if i < 16 else []) + (V2(i - 1) if i >= 1 else [])
        for x in (merge(mf + [""] * 4, va) if i < 16 else mf + va): a(x)
    for x in exchange(Eb): a(x)
    stage(16, lambda i: V4(Eb + 4 * i), lambda i: V4(vA2), lambda i: V4(vA2 + 4), post_store(112, sV, 262144), 64)
    st()
    vBb, vBs, vBa3 = 48, 56, 64
    pre = ["s_lshl_b32 s5, s%d, 11" % s_t, "s_lshl_b32 s92, s%d, 10" % s_t, "s_xor_b32 s93, s92, 1024"]
    for q in range(4): pre += ldtab(50 + q, vBb + 4 * q)
    for q in range(2): pre += ldtab(62 + q, vTw + 4 * q, 5)
    for bt in range(4):
        pre += ldtab(54 + 2 * bt, vBa3 + 8 * bt, 92) + ldtab(54 + 2 * bt, vBa3 + 8 * bt + 4, 93)
    pre += ["v_lshrrev_b32 v%d, 3, v%d" % (vT2, vN),
            "v_xor_b32 v%d, s%d, v%d" % (vT2, s_t, vT2),
            "v_xor_b32 v%d, 1, v%d" % (vT2, vT2),
            "v_and_b32 v%d, 7, v%d" % (vT3, vN),
            "v_lshlrev_b32 v%d, 8, v%d" % (vT3, vT3),
            "v_lshl_add_u32 v%d, v%d, 4, v%d" % (vT3, vT2, vT3),
            "v_add_u32 v%d, s%d, v%d" % (vT3, s_n0, vT3),
            "v_cmp_eq_u32 vcc, 0, v%d" % vT2,
            "s_mov_b32 s6, 0x%x" % f2u(2.0 ** -21),
            "v_mov_b32 v32, s6",
            "v_cndmask_b32 v33, 0, v32, vcc",
            "v_sub_f32 v34, v32, v33",
            "s_mov_b32 s6, 0x%x" % f2u(1.0 / 2048)]
    for u in range(2):
        pre += ["v_lshl_add_u32 v35, v%d, 1, %d" % (vG, u),
                "v_mul_u32_u24 v35, v35, v%d" % vT3,
                "v_and_b32 v35, 0x7ff, v35",
                "v_cvt_f32_u32 v35, v35",
                "v_mul_f32 v35, s6, v35",
                "v_cos_f32 v36, v35",
                "v_sin_f32 v37, v35",
                "v_mul_f32 v38, v36, v33", "v_mul_f32 v39, v36, v34",
                "v_mul_f32 v40, v37, v33", "v_mul_f32 v41, v37, v34",
                "v_cvt_pk_bf16_f32 v%d, v38, v40" % (vM + 2 * u),
                "v_cvt_pk_bf16_f32 v%d, v39, v41" % (vM + 2 * u + 1),
                "v_cvt_pk_bf16_f32 v%d, v40, -v38" % (vM + 4 + 2 * u),
                "v_cvt_pk_bf16_f32 v%d, v41, -v39" % (vM + 4 + 2 * u + 1)]
    pre += ["s_lshl_b32 s92, s%d, 18" % s_q, "s_lshr_b32 s93, s%d, 2" % s_p0, "s_lshl_b32 s93, s93, 16", "s_add_u32 s92, s92, s93",
            "s_add_u32 s92, s92, s5", "s_and_b32 s93, s%d, 1" % s_g, "s_lshl_b32 s93, s93, 3", "s_add_u32 s92, s92, s93",
            "v_add_u32 v%d, s92, v%d" % (vRd, vTr),
            "v_lshlrev_b32 v%d, 5, v%d" % (vSt, vN), "v_lshl_add_u32 v%d, v%d, 3, v%d" % (vSt, vG, vSt),
            "s_lshl_b32 s92, s%d, 4" % s_t, "s_add_u32 s92, s92, s%d" % s_n0, "s_lshl_b32 s92, s92, 11",
            "v_add_u32 v%d, s92, v%d" % (vSt, vSt),
            "s_cmp_eq_u32 s%d, 0" % s_t, "s_cselect_b32 s36, 0xffff, 0", "s_mov_b32 s37, 0",
            "s_lshl_b32 s92, s%d, 13" % s_w, "v_add_u32 v12, s92, v%d" % vL16,
            "s_xor_b32 s92, s92, 32768", "v_add_u32 v13, s92, v%d" % vL16]
    sync(4, pre)
    In = 192
    ld_in(In, sV, 4096)
    stage(16, lambda i: V4(In + 4 * i), lambda i: V4(vM), lambda i: V4(vM + 4),
          lambda i, D: [cvt(epos(E, i, j), D + j, D + 4 + j) for j in range(4)], 96, 4,
          lambda i: ["s_waitcnt vmcnt(%d)" % (30 - 2 * i)])
    st()
    for x in exchange(E): a(x)
    Dq = [96, 112]; tmp8 = 32
    def T1(r):
        D = Dq[r % 2]
        return [mfma(D + 8, V4(E + 4 * r), V4(vBs)), mfma(D + 12, V4(E + 4 * r), V4(vBs + 4)),
                mfma(D, V4(E + 4 * r), V4(vBb)), mfma(D + 4, V4(E + 4 * r), V4(vBb + 4))]
    def T2(r):
        D = Dq[r % 2]; P = E + 4 * r
        l = ["v_cndmask_b32 v%d, v%d, v%d, s[36:37]" % (D, D, D + 8), "v_cndmask_b32 v%d, v%d, v%d, s[36:37]" % (D + 4, D + 4, D + 12)]
        l += cmul(D, D + 4, vTw, vTw + 4, tmp8)
        l += [cvt(P + j, D + j, D + 4 + j) for j in range(4)]
        if r < 8:
            l += ["ds_write_b128 v12, %s offset:%d" % (V4(P), r * 1024)]
        return l
    for x in T1(0): a(x)
    for k in range(16):
        for x in merge((T1(k + 1) if k + 1 < 16 else []) + [""] * 2, T2(k)): a(x)
        if k == 11:
            a("s_waitcnt lgkmcnt(0)")
            a("s_barrier")
            for r in range(8):
                a("ds_read_b128 %s, v13 offset:%d" % (V4(192 + 4 * r), r * 1024))
    a("s_waitcnt lgkmcnt(0)")
    D5 = [96, 112]; Oq = [32, 40]
    def T3(r):
        D = D5[r % 2]
        return [mfma(D + 4 * bt, V4(E + 32 + 4 * r), V4(vBa3 + 8 * bt)) for bt in range(4)] + [mfma(D + 4 * bt, V4(192 + 4 * r), V4(vBa3 + 8 * bt + 4), D + 4 * bt) for bt in range(4)]
    def T4(r):
        D = D5[r % 2]; O = Oq[r % 2]
        l = ["s_mov_b32 s3, %d" % (256 * r * 2048)]
        for bt in range(4):
            l += [cvt(O + 2 * bt, D + 4 * bt, D + 4 * bt + 1), cvt(O + 2 * bt + 1, D + 4 * bt + 2, D + 4 * bt + 3),
                  "buffer_store_dwordx2 %s, v%d, s[%d:%d], s3 offen offset:%d %s" % (vr(O + 2 * bt, 2), vSt, sS, sS + 3, bt * 512, cfg.get("sst", ""))]
        return l
    for x in T3(0): a(x)
    for k in range(8):
        for x in merge(T3(k + 1) if k + 1 < 8 else [], T4(k)): a(x)
    a("s_mov_b32 s36, s54")
    a("s_mov_b32 s37, s55")
    stamps_out(a, cfg, ns[0], 36, 2, vT0, 0)
    lines, added = hazard.pad(a.lines)
    print("spec: %d lines, %d nop states added" % (len(lines), added))
    a0.lines += lines
```

```python
import sys, json
from asmlib import *
import g1

HEADER = """; Kernarg layout (80 bytes, ptrs only, base s[0:1]):
"""

def build(cfg):
    a = Asm()
    launches = []
    descs = []
    a.raw('.amdgcn_target "amdgcn-amd-amdhsa--gfx950"')
    a.raw(".text")
    which = cfg.get("kernels", "ABC")
    if "A" in which:
        import ka
        kernel_begin(a, "ka_kernel")
        v, acc, lds = ka.gen_ka(a, cfg)
        launches.append(("ka_kernel", 256, 256, lds))
        descs.append(kernel_desc("ka_kernel", v, 102, acc))
    if "B" in which:
        NW = cfg.setdefault("nw", 8)
        kernel_begin(a, "kb_kernel")
        a("s_cmp_ge_u32 s2, 256")
        a("s_cbranch_scc1 L_kb_exit")
        a("s_and_b32 s3, s2, 7")
        a("s_lshr_b32 s4, s2, 3")
        if cfg.get("allcu"):
            a("s_max_u32 s4, s4, 4")
        elif cfg.get("ncu"):
            a("s_cmp_lt_u32 s4, %d" % (32 - cfg["ncu"]))
            a("s_cbranch_scc1 L_kb_spec")
        else:
            a("s_cmp_lt_u32 s4, 4")
            a("s_cbranch_scc1 L_kb_spec")
        a("s_sub_u32 s4, s4, 4")
        if cfg.get("fold"):
            import g1f
            g1f.gen_gemm1f(a, cfg)
            a("s_mov_b32 s36, s54"); a("s_mov_b32 s37, s55")
            g1.stamps_out(a, cfg, 10, 36, 2, 3, 0)
            a("s_endpgm")
            v, acc = 256, 256
        else:
            v, acc = g1.gen_gemm1(a, cfg)
        a.label("L_kb_spec")
        if cfg.get("spec", True):
            import spec
            spec.gen_spec(a, cfg)
        a.label("L_kb_exit")
        a("s_endpgm")
        launches.append(("kb_kernel", 256, 64 * NW, 163840))
        descs.append(kernel_desc("kb_kernel", v, 102, acc))
    if "C" in which:
        import g2
        kernel_begin(a, "kc_kernel")
        v, acc, lds, thr = g2.gen_gemm2(a, cfg)
        launches.append(("kc_kernel", 256, thr, lds))
        descs.append(kernel_desc("kc_kernel", v, 102, acc))
    for t in cfg.get("_tables", []):
        a.raw(t)
    out = HEADER
    for (k, g, b, lds) in launches:
        out += "; @launch kernel=%s grid=(%d,1,1) block=(%d,1,1) lds=%d\n" % (k, g, b, lds)
    out += a.text()
    out += '.section .rodata,"a"\n' + "".join(descs)
    return out

if __name__ == "__main__":
    outp = sys.argv[1]
    cfg = json.loads(sys.argv[2]) if len(sys.argv) > 2 else {}
    open(outp, "w").write(build(cfg))
```
